```python
import torch

def _softmax(x, axis=-1):
    return torch.softmax(x, dim=axis)
def _gelu(x):
    return torch.nn.functional.gelu(x, approximate="tanh")
def _silu(x):
    return torch.nn.functional.silu(x)
def _sigmoid(x):
    return torch.sigmoid(x)
def _layernorm(x, axis=-1, eps=1e-5):
    m = x.mean(dim=axis, keepdim=True)
    v = x.var(dim=axis, keepdim=True, unbiased=False)
    return (x - m) / torch.sqrt(v + eps)
def _scatter_add(tgt, idx, src, axis=0):
    return tgt.clone().index_add_(axis, idx, src)
def _segment_sum(src, seg, n):
    out = torch.zeros((n,) + src.shape[1:], dtype=src.dtype)
    return out.index_add_(0, seg, src)
def _pad(x, pw):
    flat = tuple(v for pair in reversed(pw) for v in pair)
    return torch.nn.functional.pad(x, flat)

kernel_name = 'interleave_layers__linear_kernel_hedgehog__ssm_conv_s4d__prompt'

def setup_inputs():

    _w = (lambda a: (lambda t: t.to(torch.bfloat16) if t.is_floating_point() else t)(torch.as_tensor(a)))
    def _A_setup():
        B, S, D, H = 1, 2048, 512, 32
        Dh = D // H
        return {
            "x": _w((lambda *s: torch.randn(*s, dtype=torch.bfloat16) * 0.05)(B, S, D)),
            "wqkv": _w((lambda *s: torch.randn(*s, dtype=torch.bfloat16) * 0.4)(D, 3 * D)),
            "w_phi": _w((lambda *s: torch.randn(*s, dtype=torch.bfloat16) * 0.4)(H, Dh, Dh) * (Dh ** -0.5)),
            "wo": _w((lambda *s: torch.randn(*s, dtype=torch.bfloat16) * 0.05)(D, D)),
        }
    _A_in = _A_setup()

    def _B_setup():
        Bsz, L, D, N = 1, 2048, 512, 128
        return {
            "u": _w((lambda *s: torch.randn(*s, dtype=torch.bfloat16) * 0.05)(Bsz, L, D)),
            "log_A_real": _w((lambda *s: torch.randn(*s, dtype=torch.bfloat16) * 6.4)(D, N) * 0.5),
            "A_imag": _w((lambda *s: torch.randn(*s, dtype=torch.bfloat16) * 0.4)(D, N) * 3.14),
            "C_real": _w((lambda *s: torch.randn(*s, dtype=torch.bfloat16) * 0.4)(D, N) / N ** 0.5),
            "C_imag": _w((lambda *s: torch.randn(*s, dtype=torch.bfloat16) * 0.4)(D, N) / N ** 0.5),
            "log_dt": _w((lambda *s: torch.randn(*s, dtype=torch.bfloat16) * 0.4)(D) * 0.5 - 4.0),
            "D_skip": _w((lambda *s: torch.randn(*s, dtype=torch.bfloat16) * 0.4)(D)),
        }
    _B_in = _B_setup()

    return {
        "A_x": _A_in["x"],
        "A_wqkv": _A_in["wqkv"],
        "A_w_phi": _A_in["w_phi"],
        "A_wo": _A_in["wo"],
        "B_u": _B_in["u"],
        "B_log_A_real": _B_in["log_A_real"],
        "B_A_imag": _B_in["A_imag"],
        "B_C_real": _B_in["C_real"],
        "B_C_imag": _B_in["C_imag"],
        "B_log_dt": _B_in["log_dt"],
        "B_D_skip": _B_in["D_skip"],
    }

def reference(A_x, A_wqkv, A_w_phi, A_wo, B_u, B_log_A_real, B_A_imag, B_C_real, B_C_imag, B_log_dt, B_D_skip):
    def _A_ref(x, wqkv, w_phi, wo):
        B, S, D = x.shape
        H = 32; Dh = D // H
        qkv = (lambda x, *d: x.permute(*d))((x @ wqkv).reshape(B, S, 3, H, Dh), 2, 0, 3, 1, 4)
        q, k, v = qkv[0], qkv[1], qkv[2]
        pq = torch.einsum("bhsd,hdf->bhsf", q, w_phi)
        pk = torch.einsum("bhsd,hdf->bhsf", k, w_phi)
        phi_q = torch.concatenate([_softmax(pq, axis=-1), _softmax(-pq, axis=-1)], axis=-1)
        phi_k = torch.concatenate([_softmax(pk, axis=-1), _softmax(-pk, axis=-1)], axis=-1)
        kv = torch.einsum("bhsf,bhsd->bhfd", phi_k, v)
        z  = torch.einsum("bhsf->bhf", phi_k)
        num = torch.einsum("bhqf,bhfd->bhqd", phi_q, kv)
        den = torch.einsum("bhqf,bhf->bhq", phi_q, z)[..., None] + 1e-6
        o = num / den
        return (lambda x, *d: x.permute(*d))(o, 0, 2, 1, 3).reshape(B, S, D) @ wo

    def _B_ref(u, log_A_real, A_imag, C_real, C_imag, log_dt, D_skip):
        L = u.shape[1]
        dt = torch.exp(log_dt)
        A = -torch.exp(log_A_real) + 1j * A_imag
        C = (C_real + 1j * C_imag) * dt[:, None]
        pos = (lambda x, dt: x.to(dt))(torch.arange(L), log_dt.dtype)
        P = torch.exp((A * dt[:, None])[:, :, None] * pos[None, None, :])
        K = 2.0 * torch.einsum("dn,dnl->dl", C, P).real
        L2 = 2 * L
        u_t = (lambda x, *d: x.permute(*d))(u, 0, 2, 1)
        Kf = (lambda x, *a, **k: torch.fft.rfft(x.float(), *a, **k))(K, L2)
        Uf = (lambda x, *a, **k: torch.fft.rfft(x.float(), *a, **k))(u_t, L2)
        y = (lambda x, *a, **k: torch.fft.irfft(x, *a, **k).to(torch.bfloat16))(Uf * Kf[None, :, :], L2)[:, :, :L]
        y = (lambda x, *d: x.permute(*d))(y, 0, 2, 1)
        return y + u * D_skip[None, None, :]

    x = A_x
    x = x + _A_ref(_layernorm(x, axis=-1), A_wqkv, A_w_phi, A_wo)
    x = x + _B_ref(_layernorm(x, axis=-1), B_log_A_real, B_A_imag, B_C_real, B_C_imag, B_log_dt, B_D_skip)
    x = x + _A_ref(_layernorm(x, axis=-1), A_wqkv, A_w_phi, A_wo)
    x = x + _B_ref(_layernorm(x, axis=-1), B_log_A_real, B_A_imag, B_C_real, B_C_imag, B_log_dt, B_D_skip)
    return x
```

```python
import re

TRANS = ("v_exp_f32","v_log_f32","v_rcp_f32","v_rsq_f32","v_sqrt_f32","v_sin_f32","v_cos_f32","v_rcp_iflag_f32")

def v(n, c=1):
    return f"v{n}" if c == 1 else f"v[{n}:{n+c-1}]"
def a(n, c=1):
    return f"a{n}" if c == 1 else f"a[{n}:{n+c-1}]"
def s(n, c=1):
    return f"s{n}" if c == 1 else f"s[{n}:{n+c-1}]"

_REG = re.compile(r"^-?\|?(?:abs\()?(neg\()?([vas])(?:(\d+)|\[(\d+):(\d+)\])\)?\|?$")

def regs_of(tok):
    t = tok.strip()
    if t in ("vcc",): return [("s", "vcc_lo"), ("s", "vcc_hi")]
    if t in ("vcc_lo", "vcc_hi", "exec_lo", "exec_hi", "m0"): return [("s", t)]
    if t == "exec": return [("s", "exec_lo"), ("s", "exec_hi")]
    m = _REG.match(t)
    if not m: return []
    k = m.group(2)
    if m.group(3) is not None: return [(k, int(m.group(3)))]
    return [(k, i) for i in range(int(m.group(4)), int(m.group(5)) + 1)]

def split_ops(rest):
    ops = []; depth = 0; cur = ""
    for ch in rest:
        if ch == "[": depth += 1
        if ch == "]": depth -= 1
        if ch == "," and depth == 0:
            ops.append(cur.strip()); cur = ""
        else: cur += ch
    if cur.strip(): ops.append(cur.strip())
    mods = []
    if ops:
        parts = ops[-1].split()
        ops[-1] = parts[0]; mods = parts[1:]
    return ops, mods

class Ins:
    __slots__ = ("text","mn","ops","mods","defs","uses","cls","label","nop","target","passes","srcA","srcB","srcC","dpp","comment")
    def __init__(self, text):
        self.text = text
        self.label = None; self.nop = 0; self.target = None; self.passes = 0
        self.defs = []; self.uses = []; self.cls = "other"; self.srcA = self.srcB = self.srcC = []
        self.dpp = False
        t = text.split(";")[0].strip()
        if t.endswith(":"):
            self.label = t[:-1]; self.cls = "label"; self.mn = ""; self.ops = []; self.mods = []; return
        if t.startswith(".") or not t:
            self.cls = "dir"; self.mn = t; self.ops = []; self.mods = []; return
        sp = t.split(None, 1)
        mn = sp[0]; self.mn = mn
        ops, mods = split_ops(sp[1]) if len(sp) > 1 else ([], [])
        self.ops = ops; self.mods = mods
        R = regs_of
        base = re.sub(r"_(e32|e64|dpp|sdwa)$", "", mn)
        if mn.startswith("v_mfma"):
            self.cls = "mfma"
            self.defs = R(ops[0]); self.srcA = R(ops[1]); self.srcB = R(ops[2]); self.srcC = R(ops[3])
            self.uses = self.srcA + self.srcB + self.srcC
            self.passes = 8 if "32x32" in mn else 4
            if "x4_f32" in mn or "x2_f32" in mn:
                self.passes = 16 if "32x32" in mn else 8
        elif mn.startswith("v_"):
            self.cls = "valu"
            self.dpp = mn.endswith("_dpp") or any(m.startswith(("row_", "quad_perm", "wave_", "row_newbcast")) for m in mods)
            if base.startswith("v_cmpx"):
                self.defs = R(ops[0]) + R("exec"); self.uses = sum((R(o) for o in ops[1:]), [])
            elif base.startswith("v_cmp"):
                self.defs = R(ops[0]); self.uses = sum((R(o) for o in ops[1:]), [])
            elif base in ("v_swap_b32", "v_permlane16_swap_b32", "v_permlane32_swap_b32"):
                self.defs = R(ops[0]) + R(ops[1]); self.uses = R(ops[0]) + R(ops[1])
            elif "_co_" in base:
                self.defs = R(ops[0]) + R(ops[1]); self.uses = sum((R(o) for o in ops[2:]), [])
            else:
                self.defs = R(ops[0]); self.uses = sum((R(o) for o in ops[1:]), [])
                if base in ("v_fmac_f32", "v_dot2c_f32_bf16", "v_pk_fmac_f16", "v_writelane_b32") or self.dpp:
                    self.uses += R(ops[0])
                if base == "v_cndmask_b32" and len(ops) == 3: self.uses += R("vcc")
            if base.endswith("_d16_hi") or "op_sel" in " ".join(mods) and False:
                pass
        elif mn.startswith(("buffer_", "global_")):
            self.cls = "vmem"
            lds = "lds" in mods
            if mn.startswith("buffer_"):
                if mn in ("buffer_wbl2", "buffer_inv"):
                    pass
                elif lds:
                    self.uses = sum((R(o) for o in ops), []) + [("s", "m0")]
                elif "load" in mn:
                    self.defs = R(ops[0]); self.uses = sum((R(o) for o in ops[1:]), [])
                    if "d16" in mn: self.uses += R(ops[0])
                else:
                    self.uses = sum((R(o) for o in ops), [])
                    if "atomic" in mn and "sc0" in mods: self.defs = R(ops[0])
            else:
                if "load_lds" in mn:
                    self.uses = sum((R(o) for o in ops), []) + [("s", "m0")]
                elif "load" in mn:
                    self.defs = R(ops[0]); self.uses = sum((R(o) for o in ops[1:]), [])
                else:
                    self.uses = sum((R(o) for o in ops), [])
        elif mn.startswith("ds_"):
            self.cls = "ds"
            if mn.startswith(("ds_read", "ds_bpermute", "ds_permute", "ds_swizzle")):
                self.defs = R(ops[0]); self.uses = sum((R(o) for o in ops[1:]), [])
                if "d16" in mn: self.uses += R(ops[0])
            else:
                self.uses = sum((R(o) for o in ops), [])
        elif mn.startswith("s_"):
            if mn == "s_nop":
                self.cls = "nop"; self.nop = int(ops[0], 0) + 1
            elif mn.startswith(("s_cbranch", "s_branch")):
                self.cls = "branch"; self.target = ops[0]
            elif mn.startswith(("s_load", "s_buffer_load", "s_memtime", "s_memrealtime")):
                self.cls = "smem"; self.defs = R(ops[0]); self.uses = sum((R(o) for o in ops[1:]), [])
            elif mn in ("s_waitcnt", "s_barrier", "s_endpgm", "s_sleep", "s_setprio"):
                self.cls = "sctl"
            elif mn.startswith("s_cmp") or mn.startswith("s_bitcmp"):
                self.cls = "salu"; self.uses = sum((R(o) for o in ops), [])
            else:
                self.cls = "salu"; self.defs = R(ops[0]) if ops else []; self.uses = sum((R(o) for o in ops[1:]), [])
                if "saveexec" in mn: self.defs += R("exec"); self.uses += R("exec")
        self.defs = list(dict.fromkeys(self.defs)); self.uses = list(dict.fromkeys(self.uses))
    def is_trans(self):
        return re.sub(r"_(e32|e64)$", "", self.mn) in TRANS

def _isv(r): return r[0] in ("v", "a")

def needed(prod, cons):
    n = 0
    pd = set(prod.defs)
    if prod.cls == "valu":
        vd = {r for r in pd if _isv(r)}; sd = {r for r in pd if r[0] == "s"}
        cu = set(cons.uses); cd = set(cons.defs)
        if cons.cls == "mfma" and vd & cu: n = max(n, 2)
        if cons.cls == "mfma" and ("s", "exec_lo") in sd: n = max(n, 4)
        if cons.cls == "valu":
            b = cons.mn
            if b.startswith(("v_readlane", "v_readfirstlane")) and vd & cu: n = max(n, 1)
            if cons.dpp and vd & cu: n = max(n, 2)
            if cons.dpp and ("s", "exec_lo") in sd: n = max(n, 5)
            if b.startswith("v_permlane") and vd & cu: n = max(n, 2)
            if b.startswith(("v_permlane", "v_readlane", "v_readfirstlane", "v_writelane")) and ("s", "exec_lo") in sd: n = max(n, 4)
            if sd & cu: n = max(n, 4 if b.startswith(("v_readlane", "v_writelane")) else 2)
            if prod.is_trans() and not cons.is_trans() and vd & cu: n = max(n, 1)
            if prod.is_trans() and cons.is_trans() and vd & cu: n = max(n, 1)
            if ("sdwa" in prod.mn or any(m.startswith("dst_sel") for m in prod.mods)) and vd & (cu | cd): n = max(n, 1)
        if cons.cls in ("vmem",) and sd & cu: n = max(n, 5)
        if cons.cls in ("vmem", "ds") and prod.is_trans() and vd & cu: n = max(n, 1)
        if cons.cls == "branch" and cons.mn in ("s_cbranch_execz", "s_cbranch_execnz") and ("s", "exec_lo") in sd: n = max(n, 5)
        if cons.cls == "branch" and cons.mn in ("s_cbranch_vccz", "s_cbranch_vccnz") and ("s", "vcc_lo") in sd: n = max(n, 5)
        if cons.cls in ("salu", "smem") and sd & cu: n = max(n, 4)
    if prod.cls == "valu" and prod.mn.startswith("v_dot2"):
        vd = {r for r in pd if _isv(r)}
        cu = set(cons.uses); cd = set(cons.defs)
        if vd & (cu | cd):
            same = cons.cls == "valu" and cons.mn == prod.mn
            if same:
                ab = set()
                opsab = cons.ops[1:3]
                for o in opsab: ab |= set(regs_of(o))
                if vd & ab: n = max(n, 3)
            else: n = max(n, 3)
    if prod.cls == "mfma":
        P = prod.passes
        cu = set(cons.uses); cd = set(cons.defs)
        tab_ab = {2: 5, 4: 8, 8: 12, 16: 20}[P]
        tab_c = {2: 4, 4: 6, 8: 10, 16: 18}[P]
        if cons.cls == "mfma":
            if pd & (set(cons.srcA) | set(cons.srcB)): n = max(n, tab_ab)
            if pd & set(cons.srcC):
                if list(cons.srcC) == list(prod.defs) and cons.passes == P: pass
                else: n = max(n, tab_c)
            elif pd & cd: n = max(n, tab_c)
        elif cons.cls in ("valu", "vmem", "ds"):
            if pd & (cu | cd): n = max(n, tab_ab)
        if cons.cls == "valu" and set(prod.srcC) & cd: n = max(n, {2: 1, 4: 3, 8: 7, 16: 15}[P])
        if cons.cls in ("ds", "vmem") and set(prod.srcC) & cd: n = max(n, {2: 1, 4: 3, 8: 7, 16: 15}[P])
    if prod.cls == "salu" and ("s", "m0") in pd and ("s", "m0") in cons.uses and cons.cls in ("vmem", "ds"): n = max(n, 1)
    if prod.cls == "vmem" and ("store" in prod.mn or "atomic" in prod.mn) and ("x4" in prod.mn or "x3" in prod.mn):
        data = set(regs_of(prod.ops[0])) if prod.mn.startswith("buffer_") else set(regs_of(prod.ops[1]))
        if cons.cls in ("valu", "mfma") and data & set(cons.defs): n = max(n, 2)
        elif cons.cls in ("ds", "vmem") and data & set(cons.defs): n = max(n, 1)
    if prod.cls == "ds" and prod.mn in ("ds_write_b128", "ds_write_b96"):
        data = set(regs_of(prod.ops[1]))
        if cons.cls in ("valu", "mfma") and data & set(cons.defs): n = max(n, 2)
    return n

MAXW = 20

class Prog:
    def __init__(self):
        self.lines = []
        self.uid = 0
    def __call__(self, *txt):
        for t in txt:
            for l in t.split("\n"):
                l = l.strip()
                if l: self.lines.append(l)
    def lab(self, base):
        self.uid += 1
        return f"L{base}_{self.uid}"
    def c(self, txt):
        self.lines.append("; " + txt)
    def finalize(self, verbose=True):
        ins = [Ins(l) if not l.startswith(";") else None for l in self.lines]
        out = []
        seq = [(l, i) for l, i in zip(self.lines, ins)]
        total = 0
        for it in range(1):
            code = [x for x in seq if x[1] is not None and x[1].cls != "dir"]
            labels = {x[1].label: k for k, x in enumerate(code) if x[1].cls == "label"}
            preds = [[] for _ in code]
            for k, (l, i) in enumerate(code):
                if k + 1 < len(code) and not (i.mn in ("s_branch", "s_endpgm")): preds[k + 1].append(k)
                if i.cls == "branch" and i.target in labels: preds[labels[i.target]].append(k)
            extra = [0] * len(code)
            ins_before = {}
            for k, (l, c) in enumerate(code):
                if c.cls in ("label", "nop"): continue
                need = 0
                stack = [(p, 0) for p in preds[k]]
                seen = {}
                while stack:
                    p, dist = stack.pop()
                    if dist >= MAXW: continue
                    if p in seen and seen[p] <= dist: continue
                    seen[p] = dist
                    pi = code[p][1]
                    if pi.cls not in ("label",):
                        n = needed(pi, c)
                        if n > dist: need = max(need, n - dist)
                    w = 0 if pi.cls == "label" else (pi.nop if pi.cls == "nop" else 1)
                    w += extra[p]
                    for q in preds[p]: stack.append((q, dist + w))
                if need:
                    ins_before[id(c)] = need; extra[k] = need
            new = []
            for l, i in seq:
                if i is not None and id(i) in ins_before:
                    n = ins_before[id(i)]; total += n
                    if verbose: print(f"  [hazard] +{n} before: {l}")
                    while n > 0:
                        k = min(n, 16)
                        t = f"s_nop {k-1}"
                        new.append((t, Ins(t))); n -= k
                new.append((l, i))
            seq = new
        if verbose: print(f"  [hazard] total wait states inserted: {total}")
        self.final = seq
        check_waitcnt(seq, verbose)
        txt = ""
        for l, i in seq:
            if i is not None and i.cls == "label": txt += l + "\n"
            else: txt += "    " + l + "\n"
        return txt

def check_waitcnt(seq, verbose=True):
    code = [x for x in seq if x[1] is not None and x[1].cls not in ("dir",)]
    labels = {x[1].label: k for k, x in enumerate(code) if x[1].cls == "label"}
    vm = []; lg = []; smem = []
    errs = 0
    taken = set()
    k = 0; steps = 0
    while k < len(code) and steps < 2000000:
        steps += 1
        l, i = code[k]
        if i.cls == "label": k += 1; continue
        if i.mn == "s_waitcnt":
            t = l.split(None, 1)[1]
            m = re.search(r"vmcnt\((\d+)\)", t)
            if m:
                n = int(m.group(1))
                while len(vm) > n: vm.pop(0)
            m = re.search(r"lgkmcnt\((\d+)\)", t)
            if m:
                n = int(m.group(1))
                if n == 0: lg.clear(); smem.clear()
                elif not smem:
                    while len(lg) > n: lg.pop(0)
            k += 1; continue
        touch = set(i.uses) | set(i.defs)
        for name, q in (("vm", vm), ("lg", lg), ("smem", smem)):
            for (pl, regs) in q:
                hit = touch & regs
                if hit:
                    if name == "vm" and i.cls == "vmem" and not (set(i.uses) & regs): continue
                    if name == "lg" and i.cls == "ds" and not (set(i.uses) & regs): continue
                    errs += 1
                    if verbose: print(f"  [waitcnt] '{l}' touches {sorted(hit, key=str)[:4]} still in flight from '{pl}'")
        if i.cls == "vmem" and i.mn not in ("buffer_wbl2", "buffer_inv"):
            vm.append((l, set(i.defs)))
            if len(vm) > 63 and verbose: print(f"  [waitcnt] more than 63 vmem ops in flight at '{l}'")
        elif i.cls == "ds":
            lg.append((l, set(i.defs)))
        elif i.cls == "smem":
            smem.append((l, set(i.defs)))
        if i.cls == "branch" and i.target in labels:
            tgt = labels[i.target]
            if i.mn == "s_branch":
                if tgt > k or k not in taken:
                    taken.add(k); k = tgt; continue
            elif tgt <= k and k not in taken:
                taken.add(k); k = tgt; continue
        if i.mn == "s_endpgm":
            k += 1; continue
        k += 1
    if errs and verbose: print(f"  [waitcnt] {errs} potential problems")
    return errs
```

```python
MAIN = "interleave_layers__linear_kernel_hedgehog__ssm_conv_s4d__prompt_kernel"
HEADER = """; Kernarg layout (112 bytes, pointers only, base s[0:1]):
"""
def wrap(body, grid=256, block=256, lds=163840, vgpr=512, accum=256, sgpr=102, rodata="", extra_hdr=""):
    t = HEADER + extra_hdr
    t += f"; @launch grid=({grid},1,1) block=({block},1,1) lds={lds}\n"
    t += '.amdgcn_target "amdgcn-amd-amdhsa--gfx950"\n.text\n'
    t += f".globl {MAIN}\n.p2align 8\n.type {MAIN},@function\n{MAIN}:\n"
    t += body
    t += rodata
    t += f""".section .rodata,"a"
.p2align 6
.amdhsa_kernel {MAIN}
  .amdhsa_next_free_vgpr {vgpr}
  .amdhsa_next_free_sgpr {sgpr}
  .amdhsa_accum_offset {accum}
  .amdhsa_group_segment_fixed_size 0
  .amdhsa_kernarg_size 112
  .amdhsa_user_sgpr_count 2
  .amdhsa_user_sgpr_kernarg_segment_ptr 1
  .amdhsa_system_sgpr_workgroup_id_x 1
.end_amdhsa_kernel
"""
    return t
```

```python
import sys, os
sys.path.insert(0, os.path.dirname(os.path.abspath(__file__)))
from asmlib import *
from kern import *

WS_FLAGS = 0x0
WS_KV1   = 0x10000
WS_Z1    = 0x20000
WS_ZERO  = 0x30000
WS_KV2   = 0x30000
WS_Z2    = 0x40000
WS_ST1   = 0x44000
WS_ST2   = 0x48000
WS_WF    = 0x100000
WS_PHI1  = 0x400000
WS_PHI2  = 0x800000
WS_X1    = 0xC00000
WS_X2    = 0xE00000
WS_X3    = 0x1000000
WS_DUMP  = 0x2000000
WS_SIZE  = 0x10000000

S_WG=2; S_W=3; S_XCD=4; S_I=5; S_RB=6; S_HP=7
R_WS=8; R_X0=12; R_WQ=16; R_T=20; R_OUT=24; R_DBG=28; R_WO=32
P_X0=36; P_WQKV=38; P_WPHI=40; P_WO=42; P_LAR=46; P_AIM=48; P_CR=50; P_CI=52; P_LDT=54; P_DSK=56; P_OUT=58; P_DBG=60; P_WSP=62
S_NONCE=64; S_ONES=65; S_LOG2E=66
ST=70

L_W=0; L_X=98304
L_PK=L_X; L_V=L_X+16384; L_WSUM=L_X+24576; L_KVT=L_X+26624

class G:
    pass

def srd(p, dst, ptr, size):
    p(f"s_mov_b32 s{dst}, s{ptr}", f"s_mov_b32 s{dst+1}, s{ptr+1}", f"s_mov_b32 s{dst+2}, {size}", f"s_mov_b32 s{dst+3}, 0x20000")

def prologue(p):
    p("s_cmp_ge_u32 s2, 256", "s_cbranch_scc1 Lend")
    p("s_load_dwordx16 s[36:51], s[0:1], 0", "s_load_dwordx8 s[52:59], s[0:1], 64", "s_load_dwordx4 s[60:63], s[0:1], 96")
    p("s_memrealtime s[70:71]")
    p("v_and_b32 v1, 63, v0", "v_lshrrev_b32 v2, 6, v0")
    p(f"s_and_b32 s{S_XCD}, s2, 7", f"s_lshr_b32 s{S_I}, s2, 3")
    p(f"v_readfirstlane_b32 s{S_W}, v2")
    p(f"s_lshr_b32 s72, s{S_XCD}, 1", "s_lshl_b32 s72, s72, 2", f"s_and_b32 s73, s{S_I}, 3", f"s_add_u32 s{S_RB}, s72, s73")
    p(f"s_and_b32 s72, s{S_XCD}, 1", "s_lshl_b32 s72, s72, 3", f"s_lshr_b32 s73, s{S_I}, 2", f"s_add_u32 s{S_HP}, s72, s73")
    p(f"s_mov_b32 s{S_ONES}, 0x3f803f80", f"s_mov_b32 s{S_LOG2E}, 0x3fb8aa3b")
    p("s_waitcnt lgkmcnt(0)")
    srd(p, R_WS, P_WSP, WS_SIZE); srd(p, R_X0, P_X0, 2097152); srd(p, R_WQ, P_WQKV, 1572864)
    srd(p, R_OUT, P_OUT, 2097152); srd(p, R_DBG, P_DBG, 256); srd(p, R_WO, P_WO, 524288)
    srd(p, R_T, P_WPHI, 16384)
    L = p.lab("z")
    p("v_mov_b32 v4, 0", "v_mov_b32 v5, 0", "v_mov_b32 v6, 0", "v_mov_b32 v7, 0", "v_lshlrev_b32 v3, 4, v1")
    L2 = p.lab("z2")
    p(f"s_cmp_lg_u32 s{S_RB}, 0", f"s_cbranch_scc1 {L2}")
    p(f"s_lshl_b32 s72, s{S_HP}, 12", f"s_lshl_b32 s73, s{S_W}, 10", "s_add_u32 s72, s72, s73", f"s_add_u32 s72, s72, {WS_KV1}")
    p(f"buffer_store_dwordx4 v[4:7], v3, s[{R_WS}:{R_WS+3}], s72 offen sc1")
    p(f"s_lshl_b32 s72, s{S_HP}, 8", f"s_add_u32 s72, s72, {WS_Z1}")
    p("s_mov_b32 exec_lo, 0xffff", "s_mov_b32 exec_hi, 0")
    p(f"buffer_store_dwordx4 v[4:7], v3, s[{R_WS}:{R_WS+3}], s72 offen sc1")
    p("s_mov_b64 exec, -1")
    p(f"{L2}:")
    p(f"s_cmp_lg_u32 s{S_W}, 0", f"s_cbranch_scc1 {L}")
    p("s_lshl_b32 s72, s2, 9", f"s_add_u32 s72, s72, {WS_ZERO}")
    p("s_mov_b32 exec_lo, -1", "s_mov_b32 exec_hi, 0")
    p(f"buffer_store_dwordx4 v[4:7], v3, s[{R_WS}:{R_WS+3}], s72 offen sc1")
    p("s_mov_b64 exec, -1")
    L3 = p.lab("z3")
    p("s_cmp_lg_u32 s2, 0", f"s_cbranch_scc1 {L3}")
    p("s_or_b32 s70, s70, 0x80000000", "s_and_b32 s70, s70, 0xfffffff8", "v_mov_b32 v8, s70", "v_mov_b32 v9, 0")
    p("s_mov_b64 exec, 1")
    p(f"buffer_store_dword v8, v9, s[{R_DBG}:{R_DBG+3}], 0 offen sc0 sc1")
    p("s_mov_b64 exec, -1")
    p(f"{L3}:")
    p(f"{L}:")

XF=128
AQ, AK, AV = 80, 96, 112
WB=56
SS=52
A_PHI=240
A_WS=248
V_TRQ=44; V_TRQ2=45; V_TRV=46; V_TRV2=47

def p1_loads(p):
    p.c("P1: issue W DMA, X half 0 DMA, w_phi loads")
    p("v_and_b32 v2, 31, v1", "v_lshrrev_b32 v3, 3, v2", "v_lshlrev_b32 v3, 2, v3", "v_and_b32 v4, 3, v2", "v_add_u32 v3, v3, v4")
    p("v_bfe_u32 v4, v2, 2, 1")
    p("v_lshrrev_b32 v5, 5, v1", "v_lshlrev_b32 v5, 7, v5")
    p("v_lshl_add_u32 v5, v4, 8, v5", "v_add_u32 v5, v5, v3", "v_lshlrev_b32 v5, 1, v5")
    p(f"s_lshl_b32 s72, s{S_HP}, 10")
    for j in range(8):
        p(f"buffer_load_ushort v{28+j}, v5, s[{R_T}:{R_T+3}], s72 offen offset:{32*j}")
    p("v_mov_b32 v40, v4")
    for u in range(3):
        p(f"v_add_u32 v2, {64*u}, v1", "v_mul_u32_u24 v3, 5462, v2", "v_lshrrev_b32 v3, 16, v3")
        p("v_mul_u32_u24 v6, 12, v3", "v_sub_u32 v6, v2, v6")
        p("v_mul_u32_u24 v3, 3072, v3", "v_lshrrev_b32 v7, 2, v6", "v_lshl_add_u32 v3, v7, 10, v3")
        p("v_and_b32 v6, 3, v6", f"v_lshl_add_u32 v{14+u}, v6, 4, v3")
    p(f"s_mul_i32 s72, s{S_W}, {128*3072}", f"s_lshl_b32 s73, s{S_HP}, 6", "s_add_u32 s72, s72, s73")
    p(f"s_mul_i32 s74, s{S_W}, 24576", "s_mov_b32 m0, s74")
    for Gi in range(8):
        for u in range(3):
            p(f"buffer_load_dwordx4 v{14+u}, s[{R_WQ}:{R_WQ+3}], s72 offen lds")
            p("s_add_u32 m0, m0, 1024")
        p("s_add_u32 s72, s72, 49152")
    p("v_lshrrev_b32 v2, 5, v1", "v_and_b32 v3, 31, v1", "v_lshlrev_b32 v3, 4, v3", "v_lshl_add_u32 v17, v2, 10, v3")
    x_dma(p, 0)

def x_dma(p, hf):
    p(f"s_lshl_b32 s72, s{S_RB}, 17", f"s_lshl_b32 s73, s{S_W}, 15", "s_add_u32 s72, s72, s73", f"s_add_u32 s72, s72, {hf*512}")
    p(f"s_lshl_b32 s74, s{S_W}, 14", f"s_add_u32 m0, s74, {L_X}")
    for u in range(16):
        p(f"v_xor_b32 v{18+(u&1)}, {u<<4}, v17")
        p(f"buffer_load_dwordx4 v{18+(u&1)}, s[{R_X0}:{R_X0+3}], s72 offen lds")
        p("s_add_u32 m0, m0, 1024", "s_add_u32 s72, s72, 2048")

def x_frag_reads(p, hf):
    for s_ in range(16):
        t = 22 + (s_ & 1)
        p(f"v_xor_b32 v{t}, {s_<<5}, v20")
        p(f"ds_read_b128 {v(XF + 4*(16*hf + s_), 4)}, v{t}")
        if s_ == 7: p("s_waitcnt lgkmcnt(4)")

def w_tr_bases(p):
    p("v_lshrrev_b32 v2, 4, v1", "v_bfe_u32 v3, v1, 2, 2", "v_and_b32 v4, 3, v1", "v_lshrrev_b32 v5, 1, v2")
    p("v_lshl_add_u32 v6, v5, 3, v3", "v_mul_u32_u24 v6, 192, v6")
    p("v_and_b32 v2, 1, v2", "v_and_b32 v7, 1, v4", "v_lshrrev_b32 v4, 1, v4")
    p("v_lshlrev_b32 v8, 4, v2", "v_lshl_add_u32 v8, v7, 3, v8", "v_lshl_add_u32 v8, v4, 2, v8", f"v_lshl_add_u32 v{V_TRQ}, v8, 1, v6")
    p("v_lshlrev_b32 v8, 4, v7", "v_lshl_add_u32 v8, v2, 3, v8", "v_lshl_add_u32 v8, v4, 2, v8", f"v_lshl_add_u32 v{V_TRV}, v8, 1, v6")
    p(f"v_add_u32 v{V_TRV}, 128, v{V_TRV}")
    p(f"v_add_u32 v{V_TRQ2}, 49152, v{V_TRQ}", f"v_add_u32 v{V_TRV2}, 49152, v{V_TRV}")

def w_tr_reads(p, s_, buf, bq=None, bv=None, local=False):
    base = WB + 12*buf
    if local:
        o = s_*3072; q, vv = bq, bv
    else:
        o = (s_ % 16)*3072
        q = V_TRQ if s_ < 16 else V_TRQ2
        vv = V_TRV if s_ < 16 else V_TRV2
    p(f"ds_read_b64_tr_b16 {v(base,2)}, v{q} offset:{o}", f"ds_read_b64_tr_b16 {v(base+2,2)}, v{q} offset:{o+768}")
    p(f"ds_read_b64_tr_b16 {v(base+4,2)}, v{q} offset:{o+64}", f"ds_read_b64_tr_b16 {v(base+6,2)}, v{q} offset:{o+64+768}")
    p(f"ds_read_b64_tr_b16 {v(base+8,2)}, v{vv} offset:{o}", f"ds_read_b64_tr_b16 {v(base+10,2)}, v{vv} offset:{o+768}")

def p1_main(p):
    p.c("P1: wait W, barrier, wsum pre-pass")
    w_tr_bases(p)
    p("s_waitcnt vmcnt(16)")
    p("s_barrier")
    L = p.lab("kz")
    p(f"s_cmp_lg_u32 s{S_RB}, 0", f"s_cbranch_scc1 {L}", f"s_cmp_lg_u32 s{S_W}, 0", f"s_cbranch_scc1 {L}")
    p(f"s_lshl_b32 s72, s{S_HP}, 2", "s_add_u32 s72, s72, 64", "v_mov_b32 v2, s72", "v_mov_b32 v3, 1", "s_mov_b64 exec, 1")
    p(f"buffer_store_dword v3, v2, s[{R_DBG}:{R_DBG+3}], 0 offen sc0 sc1", "s_mov_b64 exec, -1")
    p(f"{L}:")
    p("v_cmp_eq_u32 vcc, 0, v40")
    for j in range(4): p(f"v_lshl_or_b32 v{36+j}, v{29+2*j}, 16, v{28+2*j}")
    for j in range(4):
        p(f"v_cndmask_b32 v2, 0, v{36+j}, vcc", f"v_sub_u32 v3, v{36+j}, v2")
        p(f"v_accvgpr_write_b32 a{A_PHI+j}, v2", f"v_accvgpr_write_b32 a{A_PHI+4+j}, v3")
    p(f"s_mul_i32 s72, s{S_W}, {8*3072}", f"v_add_u32 v2, s72, v{V_TRQ}", f"v_add_u32 v3, s72, v{V_TRV}")
    for t in range(3): p(f"v_mov_b32 v{48+t}, 0")
    w_tr_reads(p, 0, 0, 2, 3, True)
    for i in range(8):
        if i < 7: w_tr_reads(p, i+1, (i+1) & 1, 2, 3, True)
        p(f"s_waitcnt lgkmcnt({6 if i < 7 else 0})")
        b = WB + 12*(i & 1)
        for j in range(4):
            for t in range(3):
                p(f"v_dot2_f32_bf16 v{48+t}, v{b+4*t+j}, s{S_ONES}, v{48+t}")
    p("v_and_b32 v2, 15, v1", "v_bfe_u32 v3, v1, 4, 1", "v_lshl_add_u32 v3, v2, 1, v3", "v_lshlrev_b32 v3, 9, v3")
    p("v_lshrrev_b32 v4, 5, v1", "v_xor_b32 v4, v4, v2", "v_lshl_add_u32 v3, v4, 4, v3")
    p(f"s_lshl_b32 s72, s{S_W}, 14", f"s_add_u32 s72, s72, {L_X}", "v_add_u32 v20, s72, v3")
    p.c("wait X half 0 (own wave), read fragments, issue half 1")
    p("s_waitcnt vmcnt(0)")
    x_frag_reads(p, 0)
    p("s_waitcnt lgkmcnt(0)")
    x_dma(p, 1)
    for i in range(16): p(f"v_mov_b32 v{AQ+i}, 0", f"v_mov_b32 v{AK+i}, 0", f"v_mov_b32 v{AV+i}, 0")
    for i in range(4): p(f"v_mov_b32 v{SS+i}, 0")
    w_tr_reads(p, 0, 0)
    for s_ in range(32):
        if s_ == 16:
            p("s_waitcnt vmcnt(0)")
            x_frag_reads(p, 1)
            p("s_waitcnt lgkmcnt(0)")
            w_tr_reads(p, 16, 0)
        if s_ != 15 and s_ != 31:
            w_tr_reads(p, s_+1, (s_+1) & 1)
            p("s_waitcnt lgkmcnt(6)")
        else:
            p("s_waitcnt lgkmcnt(0)")
        gemm_step(p, s_)

def w_frag_dump(p):
    L = p.lab("wd")
    p(f"s_cmp_eq_u32 s{S_W}, 3", f"s_cbranch_scc1 {L}")
    p(f"s_mul_i32 s72, s{S_RB}, {2*3072}", f"s_lshl_b32 s73, s{S_W}, 6")
    p(f"s_cmp_eq_u32 s{S_W}, 2", "s_cselect_b32 s73, 0, s73", "s_cselect_b64 vcc, -1, 0", "s_add_u32 s72, s72, s73")
    p(f"v_cndmask_b32 v2, v{V_TRQ}, v{V_TRV}, vcc", "v_add_u32 v2, s72, v2")
    p(f"ds_read_b64_tr_b16 v[4:5], v2", "ds_read_b64_tr_b16 v[6:7], v2 offset:768")
    p(f"ds_read_b64_tr_b16 v[8:9], v2 offset:3072", "ds_read_b64_tr_b16 v[10:11], v2 offset:3840")
    p(f"s_mul_i32 s72, s{S_HP}, 98304", f"s_mul_i32 s73, s{S_RB}, {2*3072}", "s_add_u32 s72, s72, s73", f"s_lshl_b32 s73, s{S_W}, 10", "s_add_u32 s72, s72, s73", f"s_add_u32 s72, s72, {WS_WF}")
    p("v_lshlrev_b32 v3, 4, v1", "s_waitcnt lgkmcnt(0)")
    p(f"buffer_store_dwordx4 v[4:7], v3, s[{R_WS}:{R_WS+3}], s72 offen sc1")
    p("s_add_u32 s72, s72, 3072")
    p(f"buffer_store_dwordx4 v[8:11], v3, s[{R_WS}:{R_WS+3}], s72 offen sc1")
    p(f"{L}:")

def gemm_step(p, s_, wb=None):
    b = WB + 12*(s_ & 1) if wb is None else wb
    x = XF + 4*s_
    st = [f"v_dot2_f32_bf16 v{SS+(j&1)}, v{x+j}, s{S_ONES}, v{SS+(j&1)}" for j in range(4)] + \
         [f"v_dot2_f32_bf16 v{SS+2+(j&1)}, v{x+j}, v{x+j}, v{SS+2+(j&1)}" for j in range(4)]
    st = [st[0], st[4], st[1], st[5], st[2], st[6], st[3], st[7]]
    p(f"v_mfma_f32_32x32x16_bf16 {v(AQ,16)}, {v(b,4)}, {v(x,4)}, {v(AQ,16)}")
    p(*st[0:3])
    p(f"v_mfma_f32_32x32x16_bf16 {v(AK,16)}, {v(b+4,4)}, {v(x,4)}, {v(AK,16)}")
    p(*st[3:6])
    p(f"v_mfma_f32_32x32x16_bf16 {v(AV,16)}, {v(b+8,4)}, {v(x,4)}, {v(AV,16)}")
    p(*st[6:8])

def split_hi_lo(p, src, hi, lo, tmp):
    p(f"v_cvt_pk_bf16_f32 v{tmp}, v{src}, v{src}")
    p(f"v_and_b32 v{hi}, 0xffff0000, v{tmp}")
    p(f"v_sub_f32 v{lo}, v{src}, v{hi}")

def softmax_pair(p, P, C, E, out, tmp):
    mx, mn = tmp, tmp+1
    p(f"v_max3_f32 v{mx}, v{P}, v{P+1}, v{P+2}", f"v_min3_f32 v{mn}, v{P}, v{P+1}, v{P+2}")
    for i in range(3, 15, 2):
        p(f"v_max3_f32 v{mx}, v{mx}, v{P+i}, v{P+i+1}", f"v_min3_f32 v{mn}, v{mn}, v{P+i}, v{P+i+1}")
    p(f"v_max_f32 v{mx}, v{mx}, v{P+15}", f"v_min_f32 v{mn}, v{mn}, v{P+15}")
    p(f"v_mov_b32 v{tmp+2}, v{C}", f"v_mov_b32 v{tmp+4}, v{C}")
    p(f"v_mul_f32 v{tmp+3}, v{mx}, v{C}", f"v_mul_f32 v{tmp+5}, v{mn}, v{C}")
    for half in range(2):
        cb = tmp+2+2*half
        for i in range(0, 16, 2):
            if half == 0:
                p(f"v_pk_fma_f32 {v(E+i,2)}, {v(P+i,2)}, {v(cb,2)}, {v(cb,2)} op_sel:[0,0,1] op_sel_hi:[1,0,1] neg_lo:[0,0,1] neg_hi:[0,0,1]")
            else:
                p(f"v_pk_fma_f32 {v(E+i,2)}, {v(P+i,2)}, {v(cb,2)}, {v(cb,2)} op_sel:[0,0,1] op_sel_hi:[1,0,1] neg_lo:[1,0,0] neg_hi:[1,0,0]")
        for i in range(16): p(f"v_exp_f32 v{E+i}, v{E+i}")
        s0 = out + 8*half
        for i in range(4): p(f"v_pk_add_f32 {v(s0+2*i,2)}, {v(E+4*i,2)}, {v(E+4*i+2,2)}")
        p(f"v_pk_add_f32 {v(s0,2)}, {v(s0,2)}, {v(s0+2,2)}", f"v_pk_add_f32 {v(s0+4,2)}, {v(s0+4,2)}, {v(s0+6,2)}")
        p(f"v_pk_add_f32 {v(s0,2)}, {v(s0,2)}, {v(s0+4,2)}", f"v_add_f32 v{s0}, v{s0}, v{s0+1}")
        p(f"v_rcp_f32 v{mx}, v{s0}")
        for i in range(0, 16, 2):
            p(f"v_pk_mul_f32 {v(E+i,2)}, {v(E+i,2)}, {v(mx,2)} op_sel_hi:[1,0]")
        for i in range(8):
            p(f"v_cvt_pk_bf16_f32 v{s0+i}, v{E+2*i}, v{E+2*i+1}")

def p1_epilogue(p, layer):
    KV = WS_KV1 if layer == 1 else WS_KV2
    Z = WS_Z1 if layer == 1 else WS_Z2
    PHI = WS_PHI1 if layer == 1 else WS_PHI2
    p.c("P1 epilogue")
    p(f"v_add_f32 v2, v{SS}, v{SS+1}", f"v_add_f32 v3, v{SS+2}, v{SS+3}")
    p("v_permlane32_swap_b32 v2, v3", "v_add_f32 v2, v2, v3", "v_mov_b32 v3, v2", "v_permlane32_swap_b32 v2, v3")
    p("v_mul_f32 v4, 0x3b000000, v2")
    p("v_mul_f32 v5, 0x3b000000, v3", "v_fma_f32 v5, -v4, v4, v5", "v_add_f32 v5, 0x3727c5ac, v5", "v_rsq_f32 v6, v5")
    if layer == 1:
        for t in range(3):
            p(f"v_mov_b32 v{8+t}, v{48+t}")
        for t in range(3):
            p(f"v_permlane32_swap_b32 v{48+t}, v{8+t}", f"v_add_f32 v{48+t}, v{48+t}, v{8+t}")
        p("v_and_b32 v8, 31, v1", "v_lshlrev_b32 v8, 4, v8", f"s_lshl_b32 s72, s{S_W}, 2", f"s_add_u32 s72, s72, {L_WSUM}", "v_add_u32 v9, s72, v8")
        p("s_barrier")
        for t in range(3): p(f"ds_write_b32 v9, v{48+t} offset:{512*t}")
        p("s_waitcnt lgkmcnt(0)", "s_barrier")
        p(f"v_add_u32 v8, {L_WSUM}, v8")
        for t in range(3): p(f"ds_read_b128 {v(24+4*t,4)}, v8 offset:{512*t}")
        p("s_waitcnt lgkmcnt(0)")
        for t in range(3):
            b = 24+4*t
            p(f"v_add_f32 v{b}, v{b}, v{b+1}", f"v_add_f32 v{b+2}, v{b+2}, v{b+3}", f"v_add_f32 v{b}, v{b}, v{b+2}")
            split_hi_lo(p, b, b+1, b+2, b+3)
            p(f"v_cvt_pk_bf16_f32 v{b+2}, v{b+2}, 0")
            p(f"v_accvgpr_write_b32 a{A_WS+2*t}, v{b+3}", f"v_accvgpr_write_b32 a{A_WS+2*t+1}, v{b+2}")
        p(f"v_accvgpr_write_b32 a{A_WS+6}, 0", f"v_accvgpr_write_b32 a{A_WS+7}, 0")
    else:
        p("s_barrier")
    p("v_sub_f32 v7, 0, v4")
    split_hi_lo(p, 7, 8, 9, 10)
    p("v_cvt_pk_bf16_f32 v12, v8, v9", "v_cvt_pk_bf16_f32 v13, v8, 0", "v_mov_b32 v14, 0", "v_mov_b32 v15, 0")
    p("v_cmp_gt_u32 vcc, 32, v1", "v_cndmask_b32 v12, 0, v12, vcc", "v_cndmask_b32 v13, 0, v13, vcc")
    p(f"v_mfma_f32_32x32x16_bf16 {v(AK,16)}, {a(A_WS+2,4)}, v[12:15], {v(AK,16)}")
    p(f"v_mfma_f32_32x32x16_bf16 {v(AV,16)}, {a(A_WS+4,4)}, v[12:15], {v(AV,16)}")
    p(f"v_mfma_f32_32x32x16_bf16 {v(AQ,16)}, {a(A_WS,4)}, v[12:15], {v(AQ,16)}")
    p(f"v_mul_f32 v16, s{S_LOG2E}, v6")
    KB = 128
    for i in range(8): p(f"v_cvt_pk_bf16_f32 v{KB+i}, v{AK+2*i}, v{AK+2*i+1}")
    PK = 144
    for i in range(16): p(f"v_mov_b32 v{PK+i}, 0")
    p(f"v_mfma_f32_32x32x16_bf16 {v(PK,16)}, {a(A_PHI,4)}, {v(KB,4)}, {v(PK,16)}")
    p(f"v_mfma_f32_32x32x16_bf16 {v(PK,16)}, {a(A_PHI+4,4)}, {v(KB+4,4)}, {v(PK,16)}")
    VB = 192
    for i in range(0, 16, 2): p(f"v_pk_mul_f32 {v(AV+i,2)}, {v(AV+i,2)}, v[6:7] op_sel_hi:[1,0]")
    for i in range(8): p(f"v_cvt_pk_bf16_f32 v{VB+i}, v{AV+2*i}, v{AV+2*i+1}")
    QB = 136
    for i in range(8): p(f"v_cvt_pk_bf16_f32 v{QB+i}, v{AQ+2*i}, v{AQ+2*i+1}")
    PQ = 208
    for i in range(16): p(f"v_mov_b32 v{PQ+i}, 0")
    p(f"v_mfma_f32_32x32x16_bf16 {v(PQ,16)}, {a(A_PHI,4)}, {v(QB,4)}, {v(PQ,16)}")
    p(f"v_mfma_f32_32x32x16_bf16 {v(PQ,16)}, {a(A_PHI+4,4)}, {v(QB+4,4)}, {v(PQ,16)}")
    p("v_and_b32 v2, 31, v1", f"s_lshl_b32 s72, s{S_W}, 5", "v_add_u32 v2, s72, v2", "v_lshlrev_b32 v2, 5, v2")
    p("v_lshrrev_b32 v3, 5, v1", f"v_lshl_add_u32 v18, v3, 13, v2", f"v_add_u32 v18, {L_PK}, v18")
    p(f"v_lshl_add_u32 v19, v3, 12, v2", f"v_add_u32 v19, {L_V}, v19")
    p(f"ds_write_b128 v19, {v(VB,4)}", f"ds_write_b128 v19, {v(VB+4,4)} offset:16")
    E = 160; OUT = 224
    softmax_pair(p, PK, 16, E, OUT, 20)
    p(f"ds_write_b128 v18, {v(OUT,4)}", f"ds_write_b128 v18, {v(OUT+4,4)} offset:16")
    p(f"ds_write_b128 v18, {v(OUT+8,4)} offset:4096", f"ds_write_b128 v18, {v(OUT+12,4)} offset:4112")
    p("s_waitcnt lgkmcnt(0)", "s_barrier")
    p("v_lshrrev_b32 v2, 4, v1", "v_bfe_u32 v3, v1, 2, 2", "v_lshl_add_u32 v3, v2, 2, v3", "v_lshlrev_b32 v3, 5, v3")
    p("v_and_b32 v4, 3, v1", "v_lshl_add_u32 v3, v4, 3, v3")
    p(f"s_lshr_b32 s72, s{S_W}, 1", f"s_lshl_b32 s73, s72, 12", f"s_add_u32 s73, s73, {L_V}", "v_add_u32 v19, s73, v3")
    p(f"s_lshl_b32 s73, s{S_W}, 12", f"s_add_u32 s73, s73, {L_PK}", "v_add_u32 v18, s73, v3")
    DK = 128; DZ = 132; ON = 136
    for i in range(4): p(f"v_mov_b32 v{DK+i}, 0", f"v_mov_b32 v{DZ+i}, 0", f"v_mov_b32 v{ON+i}, s{S_ONES}")
    for ks in range(4):
        fa = 140 + 8*ks
        p(f"ds_read_b64_tr_b16 {v(fa,2)}, v18 offset:{1024*ks}", f"ds_read_b64_tr_b16 {v(fa+2,2)}, v18 offset:{1024*ks+512}")
        p(f"ds_read_b64_tr_b16 {v(fa+4,2)}, v19 offset:{1024*ks}", f"ds_read_b64_tr_b16 {v(fa+6,2)}, v19 offset:{1024*ks+512}")
    for ks in range(4):
        fa = 140 + 8*ks
        p(f"s_waitcnt lgkmcnt({12-4*ks})")
        p(f"v_mfma_f32_16x16x32_bf16 {v(DK,4)}, {v(fa,4)}, {v(fa+4,4)}, {v(DK,4)}")
        p(f"v_mfma_f32_16x16x32_bf16 {v(DZ,4)}, {v(ON,4)}, {v(fa,4)}, {v(DZ,4)}")
    p("v_and_b32 v2, 15, v1", "v_lshrrev_b32 v3, 5, v1", "v_lshl_add_u32 v2, v3, 4, v2", "v_lshlrev_b32 v2, 4, v2")
    p("v_bfe_u32 v3, v1, 4, 1", "v_lshl_add_u32 v2, v3, 9, v2")
    p(f"s_lshl_b32 s73, s{S_W}, 10", f"s_add_u32 s73, s73, {L_KVT}", "v_add_u32 v2, s73, v2")
    p(f"ds_write_b128 v2, {v(DK,4)}")
    p("v_lshlrev_b32 v3, 2, v1", "v_add_u32 v4, s73, v3", "s_waitcnt lgkmcnt(0)")
    for i in range(4): p(f"ds_read_b32 v{140+i}, v4 offset:{256*i}")
    if layer == 1:
        Lp = p.lab("kzp"); Lx = p.lab("kzx")
        p(f"s_lshl_b32 s74, s{S_HP}, 2", "s_add_u32 s74, s74, 64", "v_mov_b32 v5, s74", "v_cmp_eq_u32 vcc, 0, v1", "v_cndmask_b32 v5, v5, 0, vcc" if False else "v_cndmask_b32 v5, v5, v14, vcc")
        p("s_mov_b32 s75, 0")
        p(f"{Lp}:")
        p(f"buffer_load_dword v8, v5, s[{R_DBG}:{R_DBG+3}], 0 offen sc1")
        p("s_add_u32 s75, s75, 1", "s_cmp_gt_u32 s75, 0x40000", f"s_cbranch_scc1 {Lx}")
        p("s_waitcnt vmcnt(0)", "v_cmp_eq_u32 vcc, 0, v8", f"s_cbranch_vccnz {Lp}")
        p(f"{Lx}:", "s_waitcnt vmcnt(0)")
        p(f"v_readlane_b32 s{S_NONCE}, v8, 0")
    p(f"s_lshl_b32 s74, s{S_HP}, 1", f"s_lshr_b32 s75, s{S_W}, 1", "s_add_u32 s74, s74, s75")
    p(f"s_lshl_b32 s76, s74, 11", f"s_and_b32 s75, s{S_W}, 1", "s_lshl_b32 s77, s75, 9", "s_add_u32 s76, s76, s77", f"s_add_u32 s76, s76, {KV}")
    p("s_waitcnt lgkmcnt(0)")
    for i in range(4):
        p(f"buffer_atomic_add_f32 v{140+i}, v3, s[{R_WS}:{R_WS+3}], s76 offen offset:{(i&1)*256 + (i>>1)*1024}")
    p(f"s_lshl_b32 s76, s74, 7", "s_lshl_b32 s77, s75, 6", "s_add_u32 s76, s76, s77", f"s_add_u32 s76, s76, {Z}")
    p("s_mov_b32 exec_lo, 0xffff", "s_mov_b32 exec_hi, 0")
    p(f"buffer_atomic_add_f32 v{DZ}, v3, s[{R_WS}:{R_WS+3}], s76 offen")
    p("s_mov_b64 exec, -1")
    softmax_pair(p, PQ, 16, E, OUT, 20)
    p("v_and_b32 v2, 15, v1", "v_lshlrev_b32 v2, 4, v2", "v_lshrrev_b32 v3, 4, v1", "v_lshl_add_u32 v2, v3, 10, v2")
    p(f"s_lshl_b32 s74, s{S_RB}, 2", f"s_add_u32 s74, s74, s{S_W}", "s_lshl_b32 s74, s74, 16", f"s_lshl_b32 s75, s{S_HP}, 12", "s_add_u32 s74, s74, s75", f"s_add_u32 s74, s74, {PHI}")
    for c_ in range(4):
        p(f"buffer_store_dwordx4 {v(OUT+4*c_,4)}, v2, s[{R_WS}:{R_WS+3}], s74 offen offset:{256*c_} sc1")

def grid_arrive(p, epoch):
    p.c(f"grid barrier {epoch}: arrive")
    p("s_waitcnt vmcnt(0) lgkmcnt(0)", "s_barrier")
    L = p.lab("arr")
    p(f"s_cmp_lg_u32 s{S_W}, 0", f"s_cbranch_scc1 {L}")
    p(f"s_add_u32 s72, s{S_NONCE}, {epoch}", "s_lshl_b32 s73, s2, 7", "v_mov_b32 v2, s72", "v_mov_b32 v3, s73", "s_mov_b64 exec, 1")
    p(f"buffer_store_dword v2, v3, s[{R_WS}:{R_WS+3}], 0 offen sc0 sc1", "s_mov_b64 exec, -1")
    p(f"{L}:")

def grid_wait(p, epoch):
    p.c(f"grid barrier {epoch}: wait")
    Lp = p.lab("gw"); Lx = p.lab("gx")
    p("s_waitcnt vmcnt(0) lgkmcnt(0)")
    p("v_lshlrev_b32 v2, 7, v0", f"s_add_u32 s72, s{S_NONCE}, {epoch}", "s_mov_b32 s73, 0")
    p(f"{Lp}:")
    p(f"buffer_load_dword v3, v2, s[{R_WS}:{R_WS+3}], 0 offen sc1")
    p("s_add_u32 s73, s73, 1", "s_cmp_gt_u32 s73, 0x40000", f"s_cbranch_scc1 {Lx}")
    p("s_waitcnt vmcnt(0)", "v_subrev_u32 v3, s72, v3", "v_cmpx_le_u32 vcc, 8, v3", f"s_cbranch_execz {Lx}", "s_sleep 1", f"s_branch {Lp}")
    p(f"{Lx}:", "s_waitcnt vmcnt(0)", "s_mov_b64 exec, -1", "s_barrier")

S_TB=67; S_CB=68
A_WO=0
L_OL=L_X; L_ZL=L_X+32768
RES=104
def p2_ids(p):
    p(f"s_lshl_b32 s{S_TB}, s{S_XCD}, 3", f"s_lshr_b32 s72, s{S_I}, 2", f"s_add_u32 s{S_TB}, s{S_TB}, s72", f"s_and_b32 s{S_CB}, s{S_I}, 3")

def wo_stage(p):
    p.c("stage wo fragments into a[0:127] (wave private, through LDS)")
    p("v_lshrrev_b32 v2, 2, v1", "v_and_b32 v3, 3, v1", "v_bfe_u32 v4, v1, 4, 1", "v_lshlrev_b32 v4, 1, v4", "v_xor_b32 v3, v3, v4")
    p("v_lshlrev_b32 v2, 10, v2", "v_lshl_add_u32 v6, v3, 4, v2")
    p("v_lshrrev_b32 v2, 4, v1", "v_bfe_u32 v3, v1, 2, 2", "v_lshl_add_u32 v3, v2, 2, v3", "v_lshlrev_b32 v3, 6, v3")
    p("v_and_b32 v2, 1, v2", "v_lshlrev_b32 v2, 1, v2", "v_bfe_u32 v4, v1, 1, 1")
    p("v_xor_b32 v5, v4, v2", "v_lshl_add_u32 v7, v5, 4, v3")
    p("v_add_u32 v4, 2, v4", "v_xor_b32 v5, v4, v2", "v_lshl_add_u32 v8, v5, 4, v3")
    p("v_and_b32 v4, 1, v1", "v_lshl_add_u32 v7, v4, 3, v7", "v_lshl_add_u32 v8, v4, 3, v8")
    p(f"s_lshl_b32 s74, s{S_W}, 14", f"s_add_u32 s74, s74, {L_X}", "v_add_u32 v7, s74, v7", "v_add_u32 v8, s74, v8")
    for rnd in range(2):
        p(f"s_lshl_b32 s72, s{S_CB}, 8", f"s_lshl_b32 s73, s{S_W}, 6", "s_add_u32 s72, s72, s73", f"s_add_u32 s72, s72, {rnd*256*1024}")
        p("s_mov_b32 m0, s74")
        for u in range(16):
            p("s_nop 0" if u == 0 else f"s_add_u32 m0, m0, 1024", "s_nop 0")
            p(f"buffer_load_dwordx4 v6, s[{R_WO}:{R_WO+3}], s72 offen lds")
            p("s_add_u32 s72, s72, 16384")
        p("s_waitcnt vmcnt(0)")
        for s_ in range(8):
            for ct in range(2):
                d = A_WO + 8*(8*rnd + s_) + 4*ct
                p(f"ds_read_b64_tr_b16 {a(d,2)}, v{7+ct} offset:{2048*s_}", f"ds_read_b64_tr_b16 {a(d+2,2)}, v{7+ct} offset:{2048*s_+1024}")
            if s_ % 2 == 1: p("s_waitcnt lgkmcnt(4)")
        p("s_waitcnt lgkmcnt(0)")

def res_load(p, layer):
    p.c("residual prefetch")
    if layer == 1:
        p("v_and_b32 v2, 15, v1", "v_lshlrev_b32 v2, 11, v2", "v_lshrrev_b32 v3, 4, v1", "v_lshl_add_u32 v2, v3, 3, v2")
        p(f"s_lshl_b32 s72, s{S_TB}, 15", f"s_lshl_b32 s73, s{S_CB}, 8", "s_add_u32 s72, s72, s73", f"s_lshl_b32 s73, s{S_W}, 6", "s_add_u32 s72, s72, s73")
        for ct in range(2):
            for tt in range(2):
                p(f"buffer_load_dwordx2 {v(RES+4*ct+2*tt,2)}, v2, s[{R_X0}:{R_X0+3}], s72 offen offset:{32*ct+1024*tt}")
    else:
        p("v_and_b32 v2, 15, v1", "v_lshlrev_b32 v2, 4, v2", "v_lshrrev_b32 v3, 4, v1", "v_lshl_add_u32 v2, v3, 14, v2")
        for ct in range(2):
            p(f"s_lshl_b32 s72, s{S_CB}, 5", f"s_lshl_b32 s73, s{S_W}, 3", "s_add_u32 s72, s72, s73", f"s_add_u32 s72, s72, {4*ct}", "s_lshl_b32 s72, s72, 14")
            p(f"s_lshl_b32 s73, s{S_TB}, 8", "s_add_u32 s72, s72, s73", f"s_add_u32 s72, s72, {WS_X2}")
            p(f"buffer_load_dwordx4 {v(RES+4*ct,4)}, v2, s[{R_WS}:{R_WS+3}], s72 offen sc1")

def p2_body(p, layer):
    KV = WS_KV1 if layer == 1 else WS_KV2
    Z = WS_Z1 if layer == 1 else WS_Z2
    PHI = WS_PHI1 if layer == 1 else WS_PHI2
    XO = WS_X1 if layer == 1 else WS_X3
    STT = WS_ST1 if layer == 1 else WS_ST2
    p.c(f"P2 (layer {layer})")
    KF = 128; PF = 192; KB = 40
    p("v_lshlrev_b32 v2, 4, v1")
    p(f"s_lshl_b32 s72, s{S_W}, 10", f"s_add_u32 s72, s72, {Z}")
    p(f"buffer_load_dwordx4 v[4:7], v2, s[{R_WS}:{R_WS+3}], s72 offen sc1")
    p(f"s_lshl_b32 s72, s{S_W}, 14", f"s_add_u32 s72, s72, {KV}")
    p(f"s_lshl_b32 s73, s{S_TB}, 16", f"s_lshl_b32 s74, s{S_W}, 14", "s_add_u32 s73, s73, s74", f"s_add_u32 s73, s73, {PHI}")
    for hh in range(8):
        p(f"buffer_load_dwordx4 {v(KF+8*hh,4)}, v2, s[{R_WS}:{R_WS+3}], s72 offen sc1")
        p(f"buffer_load_dwordx4 {v(KF+8*hh+4,4)}, v2, s[{R_WS}:{R_WS+3}], s72 offen offset:1024 sc1")
        p(f"buffer_load_dwordx4 {v(PF+8*hh,4)}, v2, s[{R_WS}:{R_WS+3}], s73 offen sc1")
        p(f"buffer_load_dwordx4 {v(PF+8*hh+4,4)}, v2, s[{R_WS}:{R_WS+3}], s73 offen offset:1024 sc1")
        if hh < 7: p("s_add_u32 s72, s72, 2048", "s_add_u32 s73, s73, 2048")
    p(f"s_lshl_b32 s74, s{S_W}, 9", f"s_add_u32 s74, s74, {L_ZL}", "v_lshlrev_b32 v3, 3, v1", "v_add_u32 v3, s74, v3")
    p("v_lshrrev_b32 v8, 4, v1", "v_lshlrev_b32 v8, 4, v8", "v_add_u32 v8, s74, v8")
    p("s_waitcnt vmcnt(32)")
    p("v_cvt_pk_bf16_f32 v4, v4, v5", "v_cvt_pk_bf16_f32 v5, v6, v7", "ds_write_b64 v3, v[4:5]")
    p("s_waitcnt lgkmcnt(0)")
    ZF = 72
    for hh in range(8): p(f"ds_read_b128 {v(ZF+4*hh,4)}, v8 offset:{64*hh}")
    p(f"v_add_u32 v9, {L_OL}, v2", f"s_lshl_b32 s74, s{S_W}, 13", "v_add_u32 v9, s74, v9")
    for hh in range(8):
        p(f"s_waitcnt vmcnt({28-4*hh})")
        k = KF + 8*hh
        for j in range(4): p(f"v_cvt_pk_bf16_f32 v{KB+4*hh+j}, v{k+2*j}, v{k+2*j+1}")
        if hh == 0: p("s_waitcnt lgkmcnt(0)")
        for tt in range(2):
            nb = 12 + 8*tt
            p(f"v_mfma_f32_16x16x32_bf16 {v(nb,4)}, {v(KB+4*hh,4)}, {v(PF+8*hh+4*tt,4)}, 0")
            p(f"v_mfma_f32_16x16x32_bf16 {v(nb+4,4)}, {v(ZF+4*hh,4)}, {v(PF+8*hh+4*tt,4)}, 0")
        for tt in range(2):
            nb = 12 + 8*tt
            ob = 28 + 4*tt + 2*(hh & 1)
            p(f"v_add_f32 v{nb+4}, 0x358637bd, v{nb+4}", f"v_rcp_f32 v{nb+4}, v{nb+4}")
            p(f"v_pk_mul_f32 {v(nb,2)}, {v(nb,2)}, {v(nb+4,2)} op_sel_hi:[1,0]", f"v_pk_mul_f32 {v(nb+2,2)}, {v(nb+2,2)}, {v(nb+4,2)} op_sel_hi:[1,0]")
            p(f"v_cvt_pk_bf16_f32 v{ob}, v{nb}, v{nb+1}", f"v_cvt_pk_bf16_f32 v{ob+1}, v{nb+2}, v{nb+3}")
        if hh & 1:
            p(f"ds_write_b128 v9, v[28:31] offset:{(hh>>1)*2048}", f"ds_write_b128 v9, v[32:35] offset:{(hh>>1)*2048+1024}")
    p("s_waitcnt lgkmcnt(0)", "s_barrier")
    AC = 12
    BF = 128
    p(f"v_add_u32 v9, {L_OL}, v2")
    for s_ in range(16):
        p(f"ds_read_b128 {v(BF+8*s_,4)}, v9 offset:{2048*s_}", f"ds_read_b128 {v(BF+8*s_+4,4)}, v9 offset:{2048*s_+1024}")
        if s_ >= 5:
            t = s_ - 5
            p("s_waitcnt lgkmcnt(10)")
            p2_mfmas(p, t, AC, BF)
    for t in range(11, 16):
        p(f"s_waitcnt lgkmcnt({2*(15-t)})")
        p2_mfmas(p, t, AC, BF)
    T = 40
    p("s_waitcnt vmcnt(0)")
    for ct in range(2):
        for tt in range(2):
            acc = AC + 8*ct + 4*tt; r = RES + 4*ct + 2*tt
            p(f"v_lshlrev_b32 v{T}, 16, v{r}", f"v_and_b32 v{T+1}, 0xffff0000, v{r}", f"v_lshlrev_b32 v{T+2}, 16, v{r+1}", f"v_and_b32 v{T+3}, 0xffff0000, v{r+1}")
            p(f"v_pk_add_f32 {v(acc,2)}, {v(acc,2)}, {v(T,2)}", f"v_pk_add_f32 {v(acc+2,2)}, {v(acc+2,2)}, {v(T+2,2)}")
    for tt in range(2):
        a0 = AC + 4*tt; a1 = AC + 8 + 4*tt
        p(f"v_pk_add_f32 v[48:49], {v(a0,2)}, {v(a0+2,2)}", f"v_pk_add_f32 v[50:51], {v(a1,2)}, {v(a1+2,2)}")
        p("v_pk_add_f32 v[48:49], v[48:49], v[50:51]", f"v_add_f32 v{44+2*tt}, v48, v49")
        p(f"v_pk_mul_f32 v[48:49], {v(a0,2)}, {v(a0,2)}", f"v_pk_fma_f32 v[48:49], {v(a0+2,2)}, {v(a0+2,2)}, v[48:49]")
        p(f"v_pk_fma_f32 v[48:49], {v(a1,2)}, {v(a1,2)}, v[48:49]", f"v_pk_fma_f32 v[48:49], {v(a1+2,2)}, {v(a1+2,2)}, v[48:49]")
        p(f"v_add_f32 v{45+2*tt}, v48, v49")
    p("v_and_b32 v2, 15, v1", "v_lshlrev_b32 v2, 4, v2", "v_lshrrev_b32 v3, 4, v1", "v_lshl_add_u32 v4, v3, 14, v2")
    for ct in range(2):
        o = 52 + 4*ct
        for tt in range(2):
            acc = AC + 8*ct + 4*tt
            p(f"v_cvt_pk_bf16_f32 v{o+2*tt}, v{acc}, v{acc+1}", f"v_cvt_pk_bf16_f32 v{o+2*tt+1}, v{acc+2}, v{acc+3}")
        p(f"s_lshl_b32 s72, s{S_CB}, 5", f"s_lshl_b32 s73, s{S_W}, 3", "s_add_u32 s72, s72, s73", f"s_add_u32 s72, s72, {4*ct}", "s_lshl_b32 s72, s72, 14")
        p(f"s_lshl_b32 s73, s{S_TB}, 8", "s_add_u32 s72, s72, s73", f"s_add_u32 s72, s72, {XO}")
        p(f"buffer_store_dwordx4 {v(o,4)}, v4, s[{R_WS}:{R_WS+3}], s72 offen sc1")
    p("v_permlane32_swap_b32 v44, v46", "v_permlane32_swap_b32 v45, v47", "v_add_f32 v44, v44, v46", "v_add_f32 v45, v45, v47")
    p("v_permlane16_swap_b32 v44, v45", "v_add_f32 v44, v44, v45")
    p("v_lshl_add_u32 v5, v3, 2, v2", f"s_lshl_b32 s72, s{S_TB}, 8", f"s_add_u32 s72, s72, {STT}")
    p(f"buffer_atomic_add_f32 v44, v5, s[{R_WS}:{R_WS+3}], s72 offen")

def p2_mfmas(p, t, AC, BF):
    for ct in range(2):
        for tt in range(2):
            acc = AC + 8*ct + 4*tt
            c = "0" if t == 0 else v(acc,4)
            p(f"v_mfma_f32_16x16x32_bf16 {v(acc,4)}, {a(A_WO+8*t+4*ct,4)}, {v(BF+8*t+4*tt,4)}, {c}")

S_CG=69; S_HS=96; S_D0=97
L_T=L_X+58112; T_STRIDE=1312
L_CP=0; CP_COPY=4160; CP_CH=16640
L_U=L_X; U_CH=4608; L_Y=L_X+20480
def conv_ids(p):
    p(f"s_lshl_b32 s{S_CG}, s{S_XCD}, 4", f"s_lshr_b32 s72, s{S_I}, 1", f"s_add_u32 s{S_CG}, s{S_CG}, s72", f"s_and_b32 s{S_HS}, s{S_I}, 1")

def cmul(p, R, X, W, T):
    p(f"v_pk_mul_f32 {v(T,2)}, {v(X,2)}, {v(W,2)} op_sel_hi:[1,0]")
    p(f"v_pk_fma_f32 {v(R,2)}, {v(X,2)}, {v(W,2)}, {v(T,2)} op_sel:[1,1,0] op_sel_hi:[0,1,1] neg_lo:[1,0,0]")

def cexp(p, R, za, zw, mult, T):
    p(f"v_mul_f32 v{T}, {float(mult)}, v{za}" if mult in (1,2,4) else f"v_mul_f32 v{T}, {hexf(mult)}, v{za}")
    p(f"v_mul_f32 v{T+1}, {float(mult)}, v{zw}" if mult in (1,2,4) else f"v_mul_f32 v{T+1}, {hexf(mult)}, v{zw}")
    p(f"v_exp_f32 v{T}, v{T}", f"v_fract_f32 v{T+1}, v{T+1}")
    p(f"v_cos_f32 v{R}, v{T+1}", f"v_sin_f32 v{R+1}, v{T+1}")
    p(f"v_pk_mul_f32 {v(R,2)}, {v(R,2)}, {v(T,2)} op_sel_hi:[1,0]")

def hexf(x):
    import struct
    return hex(struct.unpack("<I", struct.pack("<f", float(x)))[0])

def exp_bf16(p, d, src, t):
    p(f"v_mul_f32 v{t}, s{S_LOG2E}, v{src}")
    p(f"v_fma_f32 v{t+1}, v{src}, s{S_LOG2E}, -v{t}")
    p(f"v_mov_b32 v{d}, 0x32a57060", f"v_fma_f32 v{t+1}, v{src}, v{d}, v{t+1}")
    p(f"v_exp_f32 v{t}, v{t}", f"v_mul_f32 v{t+1}, 0x3f317218, v{t+1}")
    p(f"v_fma_f32 v{t}, v{t}, v{t+1}, v{t}")
    p(f"v_cvt_pk_bf16_f32 v{d}, v{t}, v{t}", f"v_and_b32 v{d}, 0xffff0000, v{d}")

def kgen(p):
    p.c("K generation: wave w -> channel 4cg + w")
    p(f"s_lshl_b32 s72, s{S_CG}, 2", f"s_add_u32 s72, s72, s{S_W}")
    p("s_lshl_b32 s73, s72, 8", "s_lshl_b32 s74, s72, 1", "v_lshlrev_b32 v2, 1, v1", "v_mov_b32 v3, 0")
    for k, ptr in enumerate((P_LAR, P_AIM, P_CR, P_CI)):
        srd(p, R_T, ptr, 131072)
        for hf in range(2):
            p(f"buffer_load_ushort v{8+2*k+hf}, v2, s[{R_T}:{R_T+3}], s73 offen offset:{128*hf}")
    srd(p, R_T, P_LDT, 1024)
    p(f"buffer_load_ushort v16, v3, s[{R_T}:{R_T+3}], s74 offen")
    srd(p, R_T, P_DSK, 1024)
    p(f"s_lshl_b32 s74, s{S_CG}, 3", "v_and_b32 v4, 3, v1", "v_lshlrev_b32 v4, 1, v4")
    p(f"buffer_load_ushort v17, v4, s[{R_T}:{R_T+3}], s74 offen")
    p("s_waitcnt vmcnt(0)")
    for i in range(8, 18): p(f"v_lshlrev_b32 v{i}, 16, v{i}")
    for c_ in range(4): p(f"v_readlane_b32 s{S_D0+c_}, v17, {c_}")
    exp_bf16(p, 18, 16, 20)
    GA = 48
    p(f"s_mul_i32 s75, s{S_W}, 14464", f"s_add_u32 s75, s75, {L_X}")
    p("v_lshlrev_b32 v6, 2, v1", "v_add_u32 v6, s75, v6")
    p("v_and_b32 v4, 31, v1", "v_mul_u32_u24 v4, 272, v4", "v_lshrrev_b32 v5, 5, v1", "v_lshl_add_u32 v4, v5, 4, v4", "v_add_u32 v7, s75, v4")
    EA = 0; EB = 21*272
    for hf in range(2):
        exp_bf16(p, 19, 8+hf, 20)
        p("v_mul_f32 v19, v19, v18", f"v_mul_f32 v22, s{S_LOG2E}, v19", "v_sub_f32 v22, 0, v22")
        p(f"v_mul_f32 v23, v{10+hf}, v18", "v_mul_f32 v23, 0.15915494, v23")
        p(f"v_mul_f32 v24, v{12+hf}, v18", f"v_mul_f32 v25, v{14+hf}, v18", "v_pk_add_f32 v[24:25], v[24:25], v[24:25]")
        W1, W8, W256, W2, W4, X, Y, T, B = 26, 28, 30, 32, 34, 36, 38, 40, 42
        cexp(p, W1, 22, 23, 1, T); cexp(p, W8, 22, 23, 8, T); cexp(p, W256, 22, 23, 256, T)
        cmul(p, W2, W1, W1, T); cmul(p, W4, W2, W2, T)
        def put(row, X_, neg):
            p(f"v_cvt_pk_bf16_f32 v{44+(row&1)}, v{X_}, {'-' if neg else ''}v{X_+1}")
            p(f"ds_write_b32 v6, v{44+(row&1)} offset:{row*272}")
        p(f"v_mov_b32 v{Y}, 1.0", f"v_mov_b32 v{Y+1}, 0")
        for beta in range(32):
            put(21 + beta, Y, True)
            if beta < 31: cmul(p, Y, Y, W8, T)
        p(f"v_mov_b32 v{X}, v24", f"v_mov_b32 v{X+1}, v25")
        for e in range(8):
            put(e, X, False)
            if e < 7: cmul(p, X, X, W1, T)
        cmul(p, X, 24, W256, T)
        for e in range(4):
            put(8+e, X, False)
            if e < 3: cmul(p, X, X, W2, T)
        cmul(p, B, W256, W256, T)
        cmul(p, X, 24, B, T); put(12, X, False)
        cmul(p, Y, X, W4, T); put(13, Y, False)
        cmul(p, X, X, W256, T); put(14, X, False)
        cmul(p, Y, X, W4, T); put(15, Y, False)
        cmul(p, B, B, B, T)
        cmul(p, X, 24, B, T)
        for e in range(5):
            put(16+e, X, False)
            if e < 4: cmul(p, X, X, W256, T)
        p("s_waitcnt lgkmcnt(0)")
        for ks in range(8):
            fa = 64 + 8*(ks & 3)
            p(f"ds_read_b128 {v(fa,4)}, v7 offset:{EA+32*ks}", f"ds_read_b128 {v(fa+4,4)}, v7 offset:{EB+32*ks}")
            if ks >= 3:
                t = ks - 3; fb = 64 + 8*(t & 3)
                p("s_waitcnt lgkmcnt(6)")
                p(f"v_mfma_f32_32x32x16_bf16 {v(GA,16)}, {v(fb,4)}, {v(fb+4,4)}, {'0' if (hf == 0 and t == 0) else v(GA,16)}")
        for t in range(5, 8):
            fb = 64 + 8*(t & 3)
            p(f"s_waitcnt lgkmcnt({2*(7-t)})")
            p(f"v_mfma_f32_32x32x16_bf16 {v(GA,16)}, {v(fb,4)}, {v(fb+4,4)}, {v(GA,16)}")
    p(f"s_mul_i32 s75, s{S_W}, {T_STRIDE}", f"s_add_u32 s75, s75, {L_T}")
    p("v_and_b32 v2, 31, v1", "v_lshrrev_b32 v3, 5, v1", "v_cmp_eq_u32 vcc, 0, v3")
    p("v_lshlrev_b32 v4, 3, v2", "v_lshl_add_u32 v4, v3, 2, v4", "v_lshlrev_b32 v4, 1, v4", "v_add_u32 v8, s75, v4")
    p("v_lshlrev_b32 v4, 2, v2", "v_add_u32 v4, 256, v4", "v_lshlrev_b32 v5, 1, v2", "v_add_u32 v5, 384, v5")
    p("v_cndmask_b32 v9, v5, v4, vcc", "v_lshlrev_b32 v9, 1, v9", "v_add_u32 v9, s75, v9")
    p("v_cndmask_b32 v10, 64, 2, vcc" if False else "v_mov_b32 v10, 0")
    p("v_add_u32 v4, 512, v2", "v_cmp_eq_u32 s[76:77], 32, v1", "v_mov_b32 v5, 646", "v_mov_b32 v10, 640", "v_cndmask_b32 v5, v5, v10, s[76:77]")
    p("v_cndmask_b32 v11, v5, v4, vcc", "v_lshlrev_b32 v11, 1, v11", "v_add_u32 v11, s75, v11")
    p("v_mov_b32 v5, 646", "v_lshlrev_b32 v5, 1, v5", "v_add_u32 v12, s75, v5")
    for b in range(4):
        p(f"v_cvt_pk_bf16_f32 v20, v{GA+b}, v{GA+4+b}", f"v_cvt_pk_bf16_f32 v21, v{GA+8+b}, v{GA+8+b}")
        p(f"ds_write_b16 v8, v20 offset:{2*b}")
        o0 = b; o1 = 64*(b >> 1) + (b & 1)
        if o0 == o1: p(f"ds_write_b16_d16_hi v9, v20 offset:{2*o0}")
        else:
            p(f"v_add_u32 v13, {2*o1}, v9", f"v_add_u32 v14, {2*o0}, v9", "v_cndmask_b32 v13, v13, v14, vcc", "ds_write_b16_d16_hi v13, v20")
        if b == 0: p("ds_write_b16 v11, v21")
        else:
            p(f"v_add_u32 v13, {64*b}, v11", "v_cndmask_b32 v13, v12, v13, vcc", "ds_write_b16 v13, v21")
    p("v_mov_b32 v13, 0", f"v_mov_b32 v14, s75", f"ds_write_b16 v14, v13 offset:{2*641}")

FR_A=128; FR_V=112; NFA=28
def kfrag(kp):
    return a(FR_A+4*kp,4) if kp < NFA else v(FR_V+4*(kp-NFA),4)
def kfrag2(kp, h):
    return a(FR_A+4*kp+2*h,2) if kp < NFA else v(FR_V+4*(kp-NFA)+2*h,2)

def conv_prep(p):
    p.c("build shifted copies of K and load Toeplitz fragments")
    p("s_waitcnt lgkmcnt(0)", "s_barrier")
    p("v_lshlrev_b32 v2, 3, v0", "v_sub_u32 v2, 2047, v2")
    for i in range(11):
        d = 8 + i
        p(f"v_subrev_u32 v3, {i}, v2", "v_cvt_f32_i32 v4, v3", "v_cvt_pk_bf16_f32 v4, v4, v4", "v_and_b32 v4, 0xffff, v4", "v_subrev_u32 v4, 17024, v4")
        p("v_cmp_gt_i32 vcc, 128, v3", "v_cndmask_b32 v4, v4, v3, vcc", "v_cmp_gt_i32 vcc, 0, v3", "v_mov_b32 v5, 641", "v_cndmask_b32 v4, v4, v5, vcc")
        p(f"v_lshlrev_b32 v{d}, 1, v4", f"v_add_u32 v{d}, {L_T}, v{d}")
    p("v_lshlrev_b32 v6, 4, v0")
    for ch in range(4):
        tb = T_STRIDE*ch
        for i in range(11): p(f"ds_read_u16 v{24+i}, v{8+i} offset:{tb}")
        p("s_waitcnt lgkmcnt(0)")
        for k in range(5): p(f"v_lshl_or_b32 v{36+k}, v{25+2*k}, 16, v{24+2*k}")
        p("v_mov_b32 v41, v34")
        base = L_CP + CP_CH*ch
        for k in range(4): p(f"v_alignbyte_b32 v{44+k}, v{37+k}, v{36+k}, 2", f"v_alignbyte_b32 v{48+k}, v{38+k}, v{37+k}, 2")
        p(f"v_add_u32 v7, {base}, v6")
        p(f"ds_write_b128 v7, v[36:39] offset:{3*CP_COPY}")
        p("v_mov_b32 v52, v37", "v_mov_b32 v53, v38", "v_mov_b32 v54, v39", "v_mov_b32 v55, v40")
        p(f"ds_write_b128 v7, v[52:55] offset:{1*CP_COPY}", f"ds_write_b128 v7, v[44:47] offset:{2*CP_COPY}", f"ds_write_b128 v7, v[48:51]")
    p("v_mov_b32 v36, 0", "v_mov_b32 v37, 0", "v_mov_b32 v38, 0", "v_mov_b32 v39, 0")
    p("v_lshrrev_b32 v2, 1, v0", f"v_mul_u32_u24 v2, {CP_COPY}, v2", "v_and_b32 v3, 1, v0", "v_lshl_add_u32 v2, v3, 4, v2", f"v_add_u32 v2, {L_CP+4096}, v2")
    p("v_cmp_gt_u32 vcc, 32, v0", "s_and_saveexec_b64 s[76:77], vcc")
    Lz = p.lab("cz")
    p(f"s_cbranch_execz {Lz}", "ds_write_b128 v2, v[36:39]", f"{Lz}:", "s_mov_b64 exec, s[76:77]")
    p("v_lshrrev_b32 v2, 5, v0", f"v_mul_u32_u24 v2, {U_CH}, v2", "v_and_b32 v3, 31, v0", "v_lshl_add_u32 v2, v3, 4, v2", f"v_add_u32 v2, {L_U}, v2")
    p("v_cmp_gt_u32 vcc, 128, v0", "s_and_saveexec_b64 s[76:77], vcc")
    Lz = p.lab("uz")
    p(f"s_cbranch_execz {Lz}", "ds_write_b128 v2, v[36:39]", f"{Lz}:", "s_mov_b64 exec, s[76:77]")
    p("s_waitcnt lgkmcnt(0)", "s_barrier")
    p("v_and_b32 v2, 3, v1", f"v_mul_u32_u24 v2, {CP_COPY}, v2", "v_and_b32 v3, 12, v1", "v_sub_u32 v3, 28, v3")
    p("v_lshrrev_b32 v4, 5, v1", "v_lshlrev_b32 v4, 4, v4", "v_sub_u32 v3, v3, v4", "v_bfe_u32 v4, v1, 4, 1", "v_lshl_add_u32 v3, v4, 3, v3")
    p("v_lshl_add_u32 v2, v3, 1, v2", f"s_mul_i32 s72, s{S_W}, {CP_CH}", f"s_add_u32 s72, s72, {L_CP}", "v_add_u32 v2, s72, v2")
    for kp in range(64):
        p(f"ds_read_b64 {kfrag2(kp,0)}, v2 offset:{64*(63-kp)}", f"ds_read_b64 {kfrag2(kp,1)}, v2 offset:{64*(63-kp)+8}")
        if kp % 4 == 3: p("s_waitcnt lgkmcnt(6)")
    p("s_waitcnt lgkmcnt(0)")

def conv_body(p, layer):
    XI = WS_X1 if layer == 1 else WS_X3
    STT = WS_ST1 if layer == 1 else WS_ST2
    p.c(f"conv phase (layer {layer})")
    XR = 64; SR = 80
    p("v_lshrrev_b32 v2, 7, v0", "v_and_b32 v3, 127, v0", "v_lshlrev_b32 v3, 1, v3")
    for o in range(2):
        p(f"s_xor_b32 s72, s{S_HS}, {o}", "s_cmp_eq_u32 s72, 0", "s_cselect_b32 s73, 3, 1")
        p("v_mul_u32_u24 v4, s73, v2", "v_add_u32 v4, s72, v4", f"v_lshl_add_u32 v{6+o}, v4, 8, v3")
    p(f"s_lshl_b32 s72, s{S_CG}, 14", f"s_add_u32 s72, s72, {XI}", f"s_mov_b32 s73, {STT}")
    for o in range(2):
        p(f"v_lshlrev_b32 v{8+o}, 3, v{6+o}")
    for k in range(4):
        o = k >> 1; off = 8192*(k & 1)
        if off: p(f"v_add_u32 v10, {off}, v{8+o}"); vr = 10
        else: vr = 8+o
        p(f"buffer_load_dwordx4 {v(XR+4*k,4)}, v{vr}, s[{R_WS}:{R_WS+3}], s72 offen sc1")
        p(f"buffer_load_dwordx4 {v(SR+4*k,4)}, v{vr}, s[{R_WS}:{R_WS+3}], s73 offen sc1")
    XK = 16; UK = 32
    for k in range(4):
        o = k >> 1
        p(f"s_waitcnt vmcnt({6-2*k})")
        sr = SR + 4*k; xr = XR + 4*k
        for t in range(2):
            S1 = sr + 2*t; S2 = S1 + 1; o_ = 44 + 2*t
            p(f"v_mul_f32 v{S1}, 0x3b000000, v{S1}", f"v_mul_f32 v{S2}, 0x3b000000, v{S2}", f"v_fma_f32 v{S2}, -v{S1}, v{S1}, v{S2}")
            p(f"v_add_f32 v{S2}, 0x3727c5ac, v{S2}", f"v_rsq_f32 v{o_}, v{S2}", f"v_mul_f32 v{o_+1}, v{S1}, v{o_}")
        xb = XK + 8*k if k < 2 else 48
        for t in range(2):
            for h in range(2):
                p(f"v_lshlrev_b32 v{xb+4*t+2*h}, 16, v{xr+2*t+h}", f"v_and_b32 v{xb+4*t+2*h+1}, 0xffff0000, v{xr+2*t+h}")
        for t in range(2):
            for h in range(2):
                p(f"v_pk_fma_f32 {v(56+4*t+2*h,2)}, {v(xb+4*t+2*h,2)}, {v(44+2*t,2)}, {v(44+2*t,2)} op_sel:[0,0,1] op_sel_hi:[1,0,1] neg_lo:[0,0,1] neg_hi:[0,0,1]")
        ub = UK + 4*k if k < 2 else 40
        for c_ in range(4): p(f"v_cvt_pk_bf16_f32 v{ub+c_}, v{56+c_}, v{60+c_}")
        p(f"v_lshlrev_b32 v11, 1, v{6+o}", f"v_add_u32 v11, {L_U + 512 + 2048*(k&1)}, v11")
        for c_ in range(4): p(f"ds_write_b32 v11, v{ub+c_} offset:{U_CH*c_}")
    p("s_waitcnt lgkmcnt(0)", "s_barrier")
    p("v_and_b32 v2, 15, v1", "v_lshrrev_b32 v3, 5, v1", "v_sub_u32 v2, v2, v3", "v_lshlrev_b32 v2, 5, v2", "v_bfe_u32 v3, v1, 4, 1", "v_lshl_add_u32 v2, v3, 4, v2")
    p(f"s_mul_i32 s72, s{S_W}, {U_CH}", f"s_add_u32 s72, s72, {L_U+64}", "v_add_u32 v2, s72, v2")
    ACC = 96; B0 = 64
    Lb = p.lab("hsB"); Le = p.lab("hsE")
    p(f"s_cmp_eq_u32 s{S_HS}, 0", f"s_cbranch_scc0 {Lb}")
    for hs, hl in ((0, (0,3,4,7)), (1, (1,2,5,6))):
        if hs == 1: p(f"{Lb}:")
        jmax = max(hl)
        first = set()
        sets = (64, 48)
        def bread(r, j):
            p(f"ds_read_b128 {v(64+4*j,4)}, v2 offset:{64*(8*j-r+7)}")
        for j in range(jmax+1): bread(0, j)
        for r in range(8):
            p(f"s_waitcnt lgkmcnt({jmax})" if r == 0 else "s_waitcnt lgkmcnt(0)") if False else None
            for j in range(jmax+1):
                uses = [(h, h-j) for h in hl if h >= j]
                p(f"s_waitcnt lgkmcnt({jmax})")
                for (h, q) in uses:
                    qi = hl.index(h); acc = ACC + 4*qi
                    c_ = "0" if h not in first else v(acc,4)
                    first.add(h)
                    p(f"v_mfma_f32_16x16x32_bf16 {v(acc,4)}, {kfrag(8*q+r)}, {v(64+4*j,4)}, {c_}")
                if r < 7: bread(r+1, j)
                else: p(f"ds_read_b128 {v(64+4*j,4)}, v2 offset:0")
        if hs == 0: p(f"s_branch {Le}")
    p(f"{Le}:")
    p("s_waitcnt lgkmcnt(0)")
    p("v_and_b32 v2, 15, v1", "v_lshlrev_b32 v2, 6, v2", "v_lshrrev_b32 v3, 4, v1", "v_lshl_add_u32 v2, v3, 4, v2")
    p(f"s_lshl_b32 s72, s{S_W}, 12", f"s_add_u32 s72, s72, {L_Y}", "v_add_u32 v2, s72, v2")
    for q in range(4): p(f"ds_write_b128 v2, {v(ACC+4*q,4)} offset:{1024*q}")
    p("s_waitcnt lgkmcnt(0)", "s_barrier")
    p("v_lshrrev_b32 v2, 7, v0", "v_and_b32 v3, 127, v0", "v_lshlrev_b32 v3, 3, v3", "v_lshl_add_u32 v2, v2, 10, v3", f"v_add_u32 v2, {L_Y}, v2")
    for k in range(2):
        for c_ in range(4): p(f"ds_read_b64 {v(64+8*k+2*c_,2)}, v2 offset:{4096*c_ + 2048*k}")
    for k in range(2):
        p(f"s_waitcnt lgkmcnt({4 if k == 0 else 0})")
        y = 64 + 8*k; xb = XK + 8*k; ub = UK + 4*k
        for c_ in range(4):
            p(f"v_lshlrev_b32 v44, 16, v{ub+c_}", f"v_and_b32 v45, 0xffff0000, v{ub+c_}")
            p(f"v_fma_f32 v{y+2*c_}, v44, s{S_D0+c_}, v{y+2*c_}", f"v_fma_f32 v{y+2*c_+1}, v45, s{S_D0+c_}, v{y+2*c_+1}")
            p(f"v_add_f32 v{y+2*c_}, v{y+2*c_}, v{xb+c_}", f"v_add_f32 v{y+2*c_+1}, v{y+2*c_+1}, v{xb+4+c_}")
        o_ = 48 + 4*k
        p(f"v_cvt_pk_bf16_f32 v{o_}, v{y}, v{y+2}", f"v_cvt_pk_bf16_f32 v{o_+1}, v{y+4}, v{y+6}")
        p(f"v_cvt_pk_bf16_f32 v{o_+2}, v{y+1}, v{y+3}", f"v_cvt_pk_bf16_f32 v{o_+3}, v{y+5}, v{y+7}")
        if layer == 1:
            p(f"s_lshl_b32 s72, s{S_CG}, 14", f"s_add_u32 s72, s72, {WS_X2 + 8192*k}")
            p(f"buffer_store_dwordx4 {v(o_,4)}, v8, s[{R_WS}:{R_WS+3}], s72 offen sc1")
        else:
            p(f"v_lshlrev_b32 v10, 10, v6", f"s_lshl_b32 s72, s{S_CG}, 3", f"s_add_u32 s72, s72, {1024*1024*k}")
            p(f"buffer_store_dwordx2 {v(o_,2)}, v10, s[{R_OUT}:{R_OUT+3}], s72 offen")
            p(f"buffer_store_dwordx2 {v(o_+2,2)}, v10, s[{R_OUT}:{R_OUT+3}], s72 offen offset:1024")

def w_reload(p):
    p.c("reload W tile (fragment order) into LDS")
    p("v_lshlrev_b32 v2, 4, v1")
    p(f"s_mul_i32 s72, s{S_HP}, 98304", f"s_mul_i32 s73, s{S_W}, 24576", "s_add_u32 s72, s72, s73", f"s_add_u32 s72, s72, {WS_WF}", "s_mov_b32 m0, s73")
    for u in range(24):
        p("s_nop 0")
        p(f"buffer_load_dwordx4 v2, s[{R_WS}:{R_WS+3}], s72 offen sc1 lds")
        p("s_add_u32 m0, m0, 1024", "s_add_u32 s72, s72, 1024")

def p4_main(p):
    p.c("P4 main")
    p("v_and_b32 v2, 15, v1", "v_lshlrev_b32 v2, 4, v2", "v_lshrrev_b32 v3, 4, v1", "v_lshl_add_u32 v2, v3, 14, v2")
    p(f"s_lshl_b32 s72, s{S_RB}, 10", f"s_lshl_b32 s73, s{S_W}, 8", "s_add_u32 s72, s72, s73", f"s_add_u32 s72, s72, {WS_X2}")
    for s_ in range(32):
        p(f"buffer_load_dwordx4 {v(XF+4*s_,4)}, v2, s[{R_WS}:{R_WS+3}], s72 offen sc1")
        if s_ < 31: p("s_add_u32 s72, s72, 65536")
    p("v_lshlrev_b32 v44, 4, v1", "v_add_u32 v45, 49152, v44")
    for i in range(4): p(f"v_mov_b32 v{SS+i}, 0")
    def wread(s_):
        b = WB + 12*(s_ & 1); r = 44 if s_ < 16 else 45; o = (s_ % 16)*3072
        for t in range(3): p(f"ds_read_b128 {v(b+4*t,4)}, v{r} offset:{o+1024*t}")
    def swaps(s_):
        x = XF + 4*s_
        p(f"s_waitcnt vmcnt({31-s_})", f"v_permlane16_swap_b32 v{x}, v{x+2}", f"v_permlane16_swap_b32 v{x+1}, v{x+3}")
    wread(0); swaps(0)
    for s_ in range(32):
        if s_ < 31: wread(s_+1)
        p(f"s_waitcnt lgkmcnt({3 if s_ < 31 else 0})")
        b = WB + 12*(s_ & 1); x = XF + 4*s_
        st = [f"v_dot2_f32_bf16 v{SS+(j&1)}, v{x+j}, s{S_ONES}, v{SS+(j&1)}" for j in range(4)] + \
             [f"v_dot2_f32_bf16 v{SS+2+(j&1)}, v{x+j}, v{x+j}, v{SS+2+(j&1)}" for j in range(4)]
        st = [st[0], st[4], st[1], st[5], st[2], st[6], st[3], st[7]]
        z = (lambda A: "0" if s_ == 0 else v(A,16))
        p(f"v_mfma_f32_32x32x16_bf16 {v(AQ,16)}, {v(b,4)}, {v(x,4)}, {z(AQ)}")
        p(*st[0:3])
        p(f"v_mfma_f32_32x32x16_bf16 {v(AK,16)}, {v(b+4,4)}, {v(x,4)}, {z(AK)}")
        p(*st[3:6])
        if s_ < 31: swaps(s_+1)
        p(f"v_mfma_f32_32x32x16_bf16 {v(AV,16)}, {v(b+8,4)}, {v(x,4)}, {z(AV)}")
        p(*st[6:8])

def finish(p):
    p("s_waitcnt vmcnt(0)")
    p("Lend:", "s_endpgm")

def build(stop):
    p = Prog()
    prologue(p)
    p2_ids(p); conv_ids(p)
    p1_loads(p); p1_main(p); p1_epilogue(p, 1)
    if stop != "p1":
        grid_arrive(p, 1)
        w_frag_dump(p); wo_stage(p); res_load(p, 1)
        if stop != "p2": kgen(p)
        grid_wait(p, 1)
        p2_body(p, 1)
    if stop not in ("p1", "p2"):
        grid_arrive(p, 2)
        conv_prep(p)
        grid_wait(p, 2)
        conv_body(p, 1)
    if stop not in ("p1", "p2", "p3"):
        grid_arrive(p, 3)
        w_reload(p)
        grid_wait(p, 3)
        p4_main(p); p1_epilogue(p, 2)
        grid_arrive(p, 4)
        res_load(p, 2)
        grid_wait(p, 4)
        p2_body(p, 2)
        grid_arrive(p, 5)
        conv_prep(p)
        grid_wait(p, 5)
        conv_body(p, 2)
    finish(p)
    return wrap(p.finalize(verbose=True))

if __name__ == "__main__":
    stop = sys.argv[1] if len(sys.argv) > 1 else "p1"
    out = sys.argv[2] if len(sys.argv) > 2 else "k_p1.s"
    open(out, "w").write(build(stop))
```

```python
import sys, os
sys.path.insert(0, os.path.dirname(os.path.abspath(__file__)))
from asmlib import *
from kern import *

WS_FLAGS = 0x0
WS_KV1   = 0x10000
WS_Z1    = 0x20000
WS_ZERO  = 0x30000
WS_KV2   = 0x30000
WS_Z2    = 0x40000
WS_ST1   = 0x44000
WS_ST2   = 0x48000
WS_WF    = 0x100000
WS_PHI1  = 0x400000
WS_PHI2  = 0x800000
WS_X1    = 0xC00000
WS_X2    = 0xE00000
WS_X3    = 0x1000000
WS_DUMP  = 0x2000000
WS_SIZE  = 0x10000000

S_WG=2; S_W=3; S_XCD=4; S_I=5; S_RB=6; S_HP=7
R_WS=8; R_X0=12; R_WQ=16; R_T=20; R_OUT=24; R_DBG=28; R_WO=32
P_X0=36; P_WQKV=38; P_WPHI=40; P_WO=42; P_LAR=46; P_AIM=48; P_CR=50; P_CI=52; P_LDT=54; P_DSK=56; P_OUT=58; P_DBG=60; P_WSP=62
S_NONCE=64; S_ONES=65; S_LOG2E=66
ST=70

L_W=0; L_X=98304
L_PK=L_X; L_V=L_X+16384; L_KVT=L_X+24576; L_WPH=L_X+28672; L_WSUM=L_X+61440
L_KS=0
L_T=L_X+36864; T_STRIDE=1312
L_R=147328; R_STRIDE=4128
L_CP=0; CP_COPY=4160; CP_CH=16640
L_U=L_X; U_CH=4608; L_Y=L_X+20480
L_OL=L_X; L_ZL=L_X+32768
SD0=36; SD1=37; SD2=38; SD3=39

PROF = False
_stamp = [0]
STAMP_NAMES = []
STAMP_SEL = None
def stamp(p, name):
    if not PROF: return
    if STAMP_SEL is not None and name not in STAMP_SEL: return
    if STAMP_SEL is None and "." in name: return
    k = _stamp[0]; _stamp[0] += 1; STAMP_NAMES.append(name)
    assert k < 16
    p("s_waitcnt lgkmcnt(0)", "s_memrealtime s[78:79]", "s_waitcnt lgkmcnt(0)", f"s_mov_b32 s{80+k}, s78")
def stamp_dump(p):
    if not PROF: return
    L = p.lab("sd")
    p(f"s_cmp_lg_u32 s{S_W}, 0", f"s_cbranch_scc1 {L}")
    for k in range(16): p(f"v_mov_b32 v{4+k}, s{80+k}")
    p("s_lshl_b32 s72, s2, 6", f"s_add_u32 s72, s72, {WS_DUMP}", "v_mov_b32 v2, 0", "s_mov_b64 exec, 1")
    for k in range(4): p(f"buffer_store_dwordx4 {v(4+4*k,4)}, v2, s[{R_WS}:{R_WS+3}], s72 offen offset:{16*k}")
    p("s_mov_b64 exec, -1", f"{L}:")

def srd(p, dst, ptr, size):
    p(f"s_mov_b32 s{dst}, s{ptr}", f"s_mov_b32 s{dst+1}, s{ptr+1}", f"s_mov_b32 s{dst+2}, {size}", f"s_mov_b32 s{dst+3}, 0x20000")


def sub(p, fn, *a, **k):
    q = Prog(); q.uid = p.uid
    fn(q, *a, **k); p.uid = q.uid
    return q.lines

def interleave(p, main, groups, every, start=0):
    gi = 0; n = 0
    for l in main:
        p.lines.append(l)
        if l.startswith(";") or l.endswith(":"): continue
        n += 1
        if n >= start and (n - start) % every == 0 and gi < len(groups):
            for g in groups[gi]: p(g)
            gi += 1
    while gi < len(groups):
        for g in groups[gi]: p(g)
        gi += 1

def hexf(x):
    import struct
    return hex(struct.unpack("<I", struct.pack("<f", float(x)))[0])

def prologue(p):
    p("s_cmp_ge_u32 s2, 256", "s_cbranch_scc1 Lend")
    p("s_load_dwordx16 s[36:51], s[0:1], 0", "s_load_dwordx8 s[52:59], s[0:1], 64", "s_load_dwordx4 s[60:63], s[0:1], 96")
    p("s_memrealtime s[70:71]")
    p("v_and_b32 v1, 63, v0", "v_lshrrev_b32 v2, 6, v0")
    p(f"s_and_b32 s{S_XCD}, s2, 7", f"s_lshr_b32 s{S_I}, s2, 3")
    p(f"v_readfirstlane_b32 s{S_W}, v2")
    p(f"s_lshr_b32 s72, s{S_XCD}, 1", "s_lshl_b32 s72, s72, 2", f"s_and_b32 s73, s{S_I}, 3", f"s_add_u32 s{S_RB}, s72, s73")
    p(f"s_and_b32 s72, s{S_XCD}, 1", "s_lshl_b32 s72, s72, 3", f"s_lshr_b32 s73, s{S_I}, 2", f"s_add_u32 s{S_HP}, s72, s73")
    p(f"s_lshl_b32 s{S_TB}, s{S_XCD}, 3", f"s_lshr_b32 s72, s{S_I}, 2", f"s_add_u32 s{S_TB}, s{S_TB}, s72", f"s_and_b32 s{S_CB}, s{S_I}, 3")
    p(f"s_lshl_b32 s{S_CG}, s{S_XCD}, 4", f"s_lshr_b32 s72, s{S_I}, 1", f"s_add_u32 s{S_CG}, s{S_CG}, s72", f"s_and_b32 s{S_HS}, s{S_I}, 1")
    p(f"s_mov_b32 s{S_ONES}, 0x3f803f80", f"s_mov_b32 s{S_LOG2E}, 0x3fb8aa3b")
    p("v_mov_b32 v4, 0", "v_mov_b32 v5, 0", "v_mov_b32 v6, 0", "v_mov_b32 v7, 0", "v_lshlrev_b32 v3, 4, v1")
    p("s_waitcnt lgkmcnt(0)")
    p(f"s_mov_b32 s{S_HIM}, 0xffff0000")
    srd(p, R_WS, P_WSP, WS_SIZE); srd(p, R_X0, P_X0, 2097152); srd(p, R_WQ, P_WQKV, 1572864)
    srd(p, R_OUT, P_OUT, 2097152); srd(p, R_DBG, P_DBG, 256); srd(p, R_WO, P_WO, 524288)
    L = p.lab("z"); L2 = p.lab("z2"); L3 = p.lab("z3")
    p(f"s_cmp_lg_u32 s{S_RB}, 0", f"s_cbranch_scc1 {L2}")
    p(f"s_lshl_b32 s72, s{S_HP}, 12", f"s_lshl_b32 s73, s{S_W}, 10", "s_add_u32 s72, s72, s73", f"s_add_u32 s72, s72, {WS_KV1}")
    p(f"buffer_store_dwordx4 v[4:7], v3, s[{R_WS}:{R_WS+3}], s72 offen sc1")
    p(f"s_lshl_b32 s72, s{S_HP}, 8", f"s_add_u32 s72, s72, {WS_Z1}")
    p("s_mov_b32 exec_lo, 0xffff", "s_mov_b32 exec_hi, 0")
    p(f"buffer_store_dwordx4 v[4:7], v3, s[{R_WS}:{R_WS+3}], s72 offen sc1")
    p("s_mov_b64 exec, -1")
    p(f"{L2}:")
    p(f"s_cmp_lg_u32 s{S_W}, 0", f"s_cbranch_scc1 {L}")
    p("s_lshl_b32 s72, s2, 9", f"s_add_u32 s72, s72, {WS_ZERO}")
    p("s_mov_b32 exec_lo, -1", "s_mov_b32 exec_hi, 0")
    p(f"buffer_store_dwordx4 v[4:7], v3, s[{R_WS}:{R_WS+3}], s72 offen sc1")
    p("s_mov_b64 exec, -1")
    p("s_cmp_lg_u32 s2, 0", f"s_cbranch_scc1 {L3}")
    p("s_or_b32 s70, s70, 0x80000000", "s_and_b32 s70, s70, 0xfffffff8", "v_mov_b32 v8, s70", "v_mov_b32 v9, 0")
    p("s_mov_b64 exec, 1")
    p(f"buffer_store_dword v8, v9, s[{R_DBG}:{R_DBG+3}], 0 offen sc0 sc1")
    p("s_mov_b64 exec, -1")
    p(f"{L3}:")
    p(f"{L}:")

XF=128
AQ, AK, AV = 80, 96, 112
WB=56
SS=52
A_PHI=240; A_WS=248
V_TRQ=44; V_TRQ2=45; V_TRV=46; V_TRV2=47
V_WPH=36
S_TB=67; S_CB=68; S_CG=69; S_HS=96; S_D0=97; S_HIM=44
A_WO=0; RES=104
KP=80
A_KG=128
FR_A=128; FR_V=112; NFA=28

def cmul(p, R, X, W, T):
    p(f"v_pk_mul_f32 {v(T,2)}, {v(X,2)}, {v(W,2)} op_sel_hi:[1,0]")
    p(f"v_pk_fma_f32 {v(R,2)}, {v(X,2)}, {v(W,2)}, {v(T,2)} op_sel:[1,1,0] op_sel_hi:[0,1,1] neg_lo:[1,0,0]")

def cexp(p, R, za, zw, mult, T):
    p(f"v_mul_f32 v{T}, {hexf(mult)}, v{za}", f"v_mul_f32 v{T+1}, {hexf(mult)}, v{zw}")
    p(f"v_exp_f32 v{T}, v{T}", f"v_fract_f32 v{T+1}, v{T+1}")
    p(f"v_cos_f32 v{R}, v{T+1}", f"v_sin_f32 v{R+1}, v{T+1}", "s_nop 0")
    p(f"v_pk_mul_f32 {v(R,2)}, {v(R,2)}, {v(T,2)} op_sel_hi:[1,0]")

def exp_bf16(p, d, src, t):
    p(f"v_mul_f32 v{t}, s{S_LOG2E}, v{src}")
    p(f"v_fma_f32 v{t+1}, v{src}, s{S_LOG2E}, -v{t}")
    p(f"v_mov_b32 v{d}, 0x32a57060", f"v_fma_f32 v{t+1}, v{src}, v{d}, v{t+1}")
    p(f"v_exp_f32 v{t}, v{t}", f"v_mul_f32 v{t+1}, 0x3f317218, v{t+1}")
    p(f"v_fma_f32 v{t}, v{t}, v{t+1}, v{t}")
    p(f"v_cvt_pk_bf16_f32 v{d}, v{t}, v{t}", f"v_and_b32 v{d}, 0xffff0000, v{d}")

def kgen_loads(p):
    p(f"s_lshl_b32 s72, s{S_CG}, 2", f"s_add_u32 s72, s72, s{S_W}")
    p("s_lshl_b32 s73, s72, 8", "s_lshl_b32 s74, s72, 1", "v_lshlrev_b32 v2, 1, v1", "v_mov_b32 v3, 0")
    for k, ptr in enumerate((P_LAR, P_AIM, P_CR, P_CI)):
        srd(p, R_T, ptr, 131072)
        for hf in range(2):
            p(f"buffer_load_ushort v{KP+2*k+hf}, v2, s[{R_T}:{R_T+3}], s73 offen offset:{128*hf}")
    srd(p, R_T, P_LDT, 1024)
    p(f"buffer_load_ushort v{KP+8}, v3, s[{R_T}:{R_T+3}], s74 offen")
    srd(p, R_T, P_DSK, 1024)
    p(f"s_lshl_b32 s74, s{S_CG}, 3", "v_and_b32 v4, 3, v1", "v_lshlrev_b32 v4, 1, v4")
    p(f"buffer_load_ushort v{KP+9}, v4, s[{R_T}:{R_T+3}], s74 offen")
    srd(p, R_T, P_WPHI, 16384)
    p(f"s_lshl_b32 s72, s{S_HP}, 10", "v_lshlrev_b32 v2, 4, v1")
    p(f"buffer_load_dwordx4 {v(V_WPH,4)}, v2, s[{R_T}:{R_T+3}], s72 offen")

def kgen_a(p):
    for i in range(10): p(f"v_lshlrev_b32 v{KP+i}, 16, v{KP+i}")
    for c_ in range(4): p(f"v_readlane_b32 s{S_D0+c_}, v{KP+9}, {c_}")
    DT = 90; t = 92
    exp_bf16(p, DT, KP+8, t)
    W1, W8, W256, W2, W4, X, Y, T, B, C0, ZA = 94, 96, 98, 100, 102, 104, 106, 108, 110, 112, 114
    PK_ = 116
    for hf in range(2):
        exp_bf16(p, 91, KP+hf, t)
        p(f"v_mul_f32 v91, v91, v{DT}", f"v_mul_f32 v{ZA}, s{S_LOG2E}, v91", f"v_sub_f32 v{ZA}, 0, v{ZA}")
        p(f"v_mul_f32 v{ZA+1}, v{KP+2+hf}, v{DT}", f"v_mul_f32 v{ZA+1}, 0.15915494, v{ZA+1}")
        p(f"v_mul_f32 v{C0}, v{KP+4+hf}, v{DT}", f"v_mul_f32 v{C0+1}, v{KP+6+hf}, v{DT}", f"v_pk_add_f32 {v(C0,2)}, {v(C0,2)}, {v(C0,2)}")
        cexp(p, W1, ZA, ZA+1, 1, T); cexp(p, W8, ZA, ZA+1, 8, T); cexp(p, W256, ZA, ZA+1, 256, T)
        cmul(p, W2, W1, W1, T); cmul(p, W4, W2, W2, T)
        def put(row, X_, neg):
            r_ = PK_ + (row & 1)
            p(f"v_cvt_pk_bf16_f32 v{r_}, v{X_}, {'-' if neg else ''}v{X_+1}")
            p(f"v_accvgpr_write_b32 a{A_KG+53*hf+row}, v{r_}")
        fine = Prog(); coarse = Prog()
        q = fine
        def putq(q, row, X_, neg, r_):
            q(f"v_cvt_pk_bf16_f32 v{r_}, v{X_}, {'-' if neg else ''}v{X_+1}")
            q(f"v_accvgpr_write_b32 a{A_KG+53*hf+row}, v{r_}")
        q(f"v_mov_b32 v{Y}, 1.0", f"v_mov_b32 v{Y+1}, 0")
        for beta in range(32):
            putq(q, 21+beta, Y, True, PK_)
            if beta < 31: cmul(q, Y, Y, W8, T)
        q = coarse; T2 = 118; Y2 = 120
        q(f"v_mov_b32 v{X}, v{C0}", f"v_mov_b32 v{X+1}, v{C0+1}")
        for e in range(8):
            putq(q, e, X, False, PK_+1)
            if e < 7: cmul(q, X, X, W1, T2)
        cmul(q, X, C0, W256, T2)
        for e in range(4):
            putq(q, 8+e, X, False, PK_+1)
            if e < 3: cmul(q, X, X, W2, T2)
        cmul(q, B, W256, W256, T2)
        cmul(q, X, C0, B, T2); putq(q, 12, X, False, PK_+1)
        cmul(q, Y2, X, W4, T2); putq(q, 13, Y2, False, PK_+1)
        cmul(q, X, X, W256, T2); putq(q, 14, X, False, PK_+1)
        cmul(q, Y2, X, W4, T2); putq(q, 15, Y2, False, PK_+1)
        cmul(q, B, B, B, T2)
        cmul(q, X, C0, B, T2)
        for e in range(5):
            putq(q, 16+e, X, False, PK_+1)
            if e < 4: cmul(q, X, X, W256, T2)
        f, c = fine.lines, coarse.lines
        i = j = 0
        while i < len(f) or j < len(c):
            if i < len(f): p(f[i]); i += 1
            if j < len(c): p(c[j]); j += 1

def kgen_b(p):
    p.c("K generation part B")
    GA = 48
    p(f"s_mul_i32 s75, s{S_W}, 14464", f"s_add_u32 s75, s75, {L_KS}")
    p("v_lshlrev_b32 v6, 2, v1", "v_add_u32 v6, s75, v6")
    p("v_and_b32 v4, 31, v1", "v_mul_u32_u24 v4, 272, v4", "v_lshrrev_b32 v5, 5, v1", "v_lshl_add_u32 v4, v5, 4, v4", "v_add_u32 v7, s75, v4")
    EA = 0; EB = 21*272
    for hf in range(2):
        for row in range(53):
            p(f"ds_write_b32 v6, a{A_KG+53*hf+row} offset:{row*272}")
            if row % 12 == 11: p("s_waitcnt lgkmcnt(4)")
        p("s_waitcnt lgkmcnt(0)")
        for ks in range(8):
            fa = 64 + 8*(ks & 3)
            p(f"ds_read_b128 {v(fa,4)}, v7 offset:{EA+32*ks}", f"ds_read_b128 {v(fa+4,4)}, v7 offset:{EB+32*ks}")
            if ks >= 3:
                t = ks - 3; fb = 64 + 8*(t & 3)
                p("s_waitcnt lgkmcnt(6)")
                p(f"v_mfma_f32_32x32x16_bf16 {v(GA,16)}, {v(fb,4)}, {v(fb+4,4)}, {'0' if (hf == 0 and t == 0) else v(GA,16)}")
        for t in range(5, 8):
            fb = 64 + 8*(t & 3)
            p(f"s_waitcnt lgkmcnt({2*(7-t)})")
            p(f"v_mfma_f32_32x32x16_bf16 {v(GA,16)}, {v(fb,4)}, {v(fb+4,4)}, {v(GA,16)}")
    p(f"s_mul_i32 s75, s{S_W}, {T_STRIDE}", f"s_add_u32 s75, s75, {L_T}")
    p("v_and_b32 v2, 31, v1", "v_lshrrev_b32 v3, 5, v1", "v_cmp_eq_u32 vcc, 0, v3")
    p("v_lshlrev_b32 v4, 3, v2", "v_lshl_add_u32 v4, v3, 2, v4", "v_lshlrev_b32 v4, 1, v4", "v_add_u32 v8, s75, v4")
    p("v_lshlrev_b32 v4, 2, v2", "v_add_u32 v4, 256, v4", "v_lshlrev_b32 v5, 1, v2", "v_add_u32 v5, 384, v5")
    p("v_cndmask_b32 v9, v5, v4, vcc", "v_lshlrev_b32 v9, 1, v9", "v_add_u32 v9, s75, v9")
    p("v_add_u32 v4, 512, v2", "v_cmp_eq_u32 s[76:77], 32, v1", "v_mov_b32 v5, 646", "v_mov_b32 v10, 640", "v_cndmask_b32 v5, v5, v10, s[76:77]")
    p("v_cndmask_b32 v11, v5, v4, vcc", "v_lshlrev_b32 v11, 1, v11", "v_add_u32 v11, s75, v11")
    p("v_mov_b32 v5, 646", "v_lshlrev_b32 v5, 1, v5", "v_add_u32 v12, s75, v5")
    for b in range(4):
        p(f"v_cvt_pk_bf16_f32 v20, v{GA+b}, v{GA+4+b}", f"v_cvt_pk_bf16_f32 v21, v{GA+8+b}, v{GA+8+b}")
        p(f"ds_write_b16 v8, v20 offset:{2*b}")
        o0 = b; o1 = 64*(b >> 1) + (b & 1)
        if o0 == o1: p(f"ds_write_b16_d16_hi v9, v20 offset:{2*o0}")
        else:
            p(f"v_add_u32 v13, {2*o1}, v9", f"v_add_u32 v14, {2*o0}, v9", "v_cndmask_b32 v13, v13, v14, vcc", "ds_write_b16_d16_hi v13, v20")
        if b == 0: p("ds_write_b16 v11, v21")
        else:
            p(f"v_add_u32 v13, {64*b}, v11", "v_cndmask_b32 v13, v12, v13, vcc", "ds_write_b16 v13, v21")
    p("v_mov_b32 v13, 0", f"v_mov_b32 v14, s75", f"ds_write_b16 v14, v13 offset:{2*641}")

def w_dma_groups(p):
    for u in range(3):
        p(f"v_add_u32 v2, {64*u}, v1", "v_mul_u32_u24 v3, 5462, v2", "v_lshrrev_b32 v3, 16, v3")
        p("v_mul_u32_u24 v6, 12, v3", "v_sub_u32 v6, v2, v6")
        p("v_mul_u32_u24 v3, 3072, v3", "v_lshrrev_b32 v7, 2, v6", "v_lshl_add_u32 v3, v7, 10, v3")
        p("v_and_b32 v6, 3, v6", f"v_lshl_add_u32 v{14+u}, v6, 4, v3")
    p(f"s_mul_i32 s{SD0}, s{S_W}, {128*3072}", f"s_lshl_b32 s73, s{S_HP}, 6", f"s_add_u32 s{SD0}, s{SD0}, s73")
    p(f"s_mul_i32 s{SD1}, s{S_W}, 24576")
    gs = []
    for Gi in range(8):
        for u in range(3):
            g = [f"s_add_u32 m0, s{SD1}, {3072*Gi + 1024*u}", f"s_add_u32 s{SD2}, s{SD0}, {49152*Gi}",
                 f"buffer_load_dwordx4 v{14+u}, s[{R_WQ}:{R_WQ+3}], s{SD2} offen lds"]
            gs.append(g)
    return gs

def x_dma_groups(p, hf):
    p(f"s_lshl_b32 s{SD0}, s{S_RB}, 17", f"s_lshl_b32 s73, s{S_W}, 15", f"s_add_u32 s{SD0}, s{SD0}, s73", f"s_add_u32 s{SD0}, s{SD0}, {hf*512}")
    p(f"s_lshl_b32 s{SD1}, s{S_W}, 14", f"s_add_u32 s{SD1}, s{SD1}, {L_X}")
    gs = []
    for u in range(16):
        gs.append([f"v_xor_b32 v{18+(u&1)}, {u<<4}, v17", f"s_add_u32 m0, s{SD1}, {1024*u}", f"s_add_u32 s{SD2}, s{SD0}, {2048*u}",
                   f"buffer_load_dwordx4 v{18+(u&1)}, s[{R_X0}:{R_X0+3}], s{SD2} offen lds"])
    return gs

def x_frag_reads(p, hf):
    for s_ in range(16):
        t = 22 + (s_ & 1)
        p(f"v_xor_b32 v{t}, {s_<<5}, v20")
        p(f"ds_read_b128 {v(XF + 4*(16*hf + s_), 4)}, v{t}")
        if s_ == 11: p("s_waitcnt lgkmcnt(6)")

def stats_dot2(p, hf):
    for s_ in range(16):
        x = XF + 4*(16*hf + s_)
        for j in range(4):
            p(f"v_dot2_f32_bf16 v{SS+(j&1)}, v{x+j}, s{S_ONES}, v{SS+(j&1)}", f"v_dot2_f32_bf16 v{SS+2+(j&1)}, v{x+j}, v{x+j}, v{SS+2+(j&1)}")

def w_tr_bases(p):
    p("v_lshrrev_b32 v2, 4, v1", "v_bfe_u32 v3, v1, 2, 2", "v_and_b32 v4, 3, v1", "v_lshrrev_b32 v5, 1, v2")
    p("v_lshl_add_u32 v6, v5, 3, v3", "v_mul_u32_u24 v6, 192, v6")
    p("v_and_b32 v2, 1, v2", "v_and_b32 v7, 1, v4", "v_lshrrev_b32 v4, 1, v4")
    p("v_lshlrev_b32 v8, 4, v2", "v_lshl_add_u32 v8, v7, 3, v8", "v_lshl_add_u32 v8, v4, 2, v8", f"v_lshl_add_u32 v{V_TRQ}, v8, 1, v6")
    p("v_lshlrev_b32 v8, 4, v7", "v_lshl_add_u32 v8, v2, 3, v8", "v_lshl_add_u32 v8, v4, 2, v8", f"v_lshl_add_u32 v{V_TRV}, v8, 1, v6")
    p(f"v_add_u32 v{V_TRV}, 128, v{V_TRV}")
    p(f"v_add_u32 v{V_TRQ2}, 49152, v{V_TRQ}", f"v_add_u32 v{V_TRV2}, 49152, v{V_TRV}")

def w_tr_reads(s_, buf, bq=None, bv=None, local=False):
    base = WB + 12*buf
    if local: o = s_*3072; q, vv = bq, bv
    else:
        o = (s_ % 16)*3072
        q = V_TRQ if s_ < 16 else V_TRQ2; vv = V_TRV if s_ < 16 else V_TRV2
    return [f"ds_read_b64_tr_b16 {v(base,2)}, v{q} offset:{o}", f"ds_read_b64_tr_b16 {v(base+2,2)}, v{q} offset:{o+768}",
            f"ds_read_b64_tr_b16 {v(base+4,2)}, v{q} offset:{o+64}", f"ds_read_b64_tr_b16 {v(base+6,2)}, v{q} offset:{o+64+768}",
            f"ds_read_b64_tr_b16 {v(base+8,2)}, v{vv} offset:{o}", f"ds_read_b64_tr_b16 {v(base+10,2)}, v{vv} offset:{o+768}"]

def w_frag_dump(p):
    p(f"s_min_u32 s74, s{S_W}, 2", f"s_mul_i32 s72, s{S_RB}, {2*3072}", "s_lshl_b32 s73, s74, 6")
    p("s_cmp_eq_u32 s74, 2", "s_cselect_b32 s73, 0, s73", "s_cselect_b64 vcc, -1, 0", "s_add_u32 s72, s72, s73")
    p(f"v_cndmask_b32 v2, v{V_TRQ}, v{V_TRV}, vcc", "v_add_u32 v2, s72, v2")
    p("ds_read_b64_tr_b16 v[4:5], v2", "ds_read_b64_tr_b16 v[6:7], v2 offset:768")
    p("ds_read_b64_tr_b16 v[8:9], v2 offset:3072", "ds_read_b64_tr_b16 v[10:11], v2 offset:3840")
    p(f"s_mul_i32 s72, s{S_HP}, 98304", f"s_mul_i32 s73, s{S_RB}, {2*3072}", "s_add_u32 s72, s72, s73", "s_lshl_b32 s73, s74, 10", "s_add_u32 s72, s72, s73", f"s_add_u32 s72, s72, {WS_WF}")
    p("v_lshlrev_b32 v3, 4, v1", "s_waitcnt lgkmcnt(0)")
    p(f"buffer_store_dwordx4 v[4:7], v3, s[{R_WS}:{R_WS+3}], s72 offen sc1")
    p("s_add_u32 s72, s72, 3072")
    p(f"buffer_store_dwordx4 v[8:11], v3, s[{R_WS}:{R_WS+3}], s72 offen sc1")

def p1(p):
    p.c("================ P1 ================")
    kgen_loads(p)
    p("v_lshrrev_b32 v2, 5, v1", "v_and_b32 v3, 31, v1", "v_lshlrev_b32 v3, 4, v3", "v_lshl_add_u32 v17, v2, 10, v3")
    for g in x_dma_groups(p, 0): p(*g)
    wg = w_dma_groups(p)
    w_tr_bases(p)
    p("v_and_b32 v2, 15, v1", "v_bfe_u32 v3, v1, 4, 1", "v_lshl_add_u32 v3, v2, 1, v3", "v_lshlrev_b32 v3, 9, v3")
    p("v_lshrrev_b32 v4, 5, v1", "v_xor_b32 v4, v4, v2", "v_lshl_add_u32 v3, v4, 4, v3")
    p(f"s_lshl_b32 s72, s{S_W}, 14", f"s_add_u32 s72, s72, {L_X}", "v_add_u32 v20, s72, v3")
    for i in range(4): p(f"v_mov_b32 v{SS+i}, 0")
    stamp(p, "p1.issued")
    p("s_waitcnt vmcnt(16)")
    stamp(p, "p1.par")
    ka = sub(p, kgen_a)
    n1 = 24*15
    interleave(p, ka[:n1], wg, 15, start=1)
    stamp(p, "p1.wiss")
    p("s_waitcnt vmcnt(24)")
    x_frag_reads(p, 0)
    p("s_waitcnt lgkmcnt(0)")
    xg = x_dma_groups(p, 1)
    rest = ka[n1:] + sub(p, stats_dot2, 0)
    interleave(p, rest, xg, max(1, len(rest)//17), start=1)
    stamp(p, "p1.x1iss")
    p("s_waitcnt vmcnt(16)")
    stamp(p, "p1.wland")
    p(f"s_mul_i32 s72, s{S_W}, {8*3072}", f"v_add_u32 v2, s72, v{V_TRQ}", f"v_add_u32 v3, s72, v{V_TRV}")
    for t in range(3): p(f"v_mov_b32 v{48+t}, 0")
    p(*w_tr_reads(0, 0, 2, 3, True))
    for i in range(8):
        if i < 7: p(*w_tr_reads(i+1, (i+1) & 1, 2, 3, True))
        p(f"s_waitcnt lgkmcnt({6 if i < 7 else 0})")
        b = WB + 12*(i & 1)
        for j in range(4):
            for t in range(3): p(f"v_dot2_f32_bf16 v{48+t}, v{b+4*t+j}, s{S_ONES}, v{48+t}")
    stamp(p, "p1.wsum")
    p("s_barrier")
    L = p.lab("kz")
    p(f"s_cmp_lg_u32 s{S_RB}, 0", f"s_cbranch_scc1 {L}", f"s_cmp_lg_u32 s{S_W}, 0", f"s_cbranch_scc1 {L}")
    p(f"s_lshl_b32 s72, s{S_HP}, 2", "s_add_u32 s72, s72, 64", "v_mov_b32 v2, s72", "v_mov_b32 v3, 1", "s_mov_b64 exec, 1")
    p(f"buffer_store_dword v3, v2, s[{R_DBG}:{R_DBG+3}], 0 offen sc0 sc1", "s_mov_b64 exec, -1")
    p(f"{L}:")
    p(*w_tr_reads(0, 0))
    def steps(lo, hi):
        for s_ in range(lo, hi):
            b = WB + 12*(s_ & 1); x = XF + 4*s_
            z = (lambda A: "0" if s_ == 0 else v(A,16))
            if s_+1 < hi:
                p(*w_tr_reads(s_+1, (s_+1) & 1)); p("s_waitcnt lgkmcnt(6)")
            else: p("s_waitcnt lgkmcnt(0)")
            p(f"v_mfma_f32_32x32x16_bf16 {v(AQ,16)}, {v(b,4)}, {v(x,4)}, {z(AQ)}")
            p(f"v_mfma_f32_32x32x16_bf16 {v(AK,16)}, {v(b+4,4)}, {v(x,4)}, {z(AK)}")
            p(f"v_mfma_f32_32x32x16_bf16 {v(AV,16)}, {v(b+8,4)}, {v(x,4)}, {z(AV)}")
    stamp(p, "p1.loop0")
    steps(0, 16)
    stamp(p, "p1.half")
    p("s_waitcnt vmcnt(0)")
    x_frag_reads(p, 1)
    p(f"s_lshl_b32 s74, s{S_HP}, 2", "s_add_u32 s74, s74, 64", "v_mov_b32 v42, s74", "v_cmp_eq_u32 vcc, 0, v1", "v_mov_b32 v43, 0", "s_nop 0", "v_cndmask_b32 v42, v42, v43, vcc")
    p(f"buffer_load_dword v43, v42, s[{R_DBG}:{R_DBG+3}], 0 offen sc1")
    for t in range(3): p(f"v_mov_b32 v{8+t}, v{48+t}")
    for t in range(3): p(f"v_permlane32_swap_b32 v{48+t}, v{8+t}")
    for t in range(3): p(f"v_add_f32 v{48+t}, v{48+t}, v{8+t}")
    p("v_and_b32 v8, 31, v1", "v_lshlrev_b32 v8, 4, v8", f"s_lshl_b32 s72, s{S_W}, 2", f"s_add_u32 s72, s72, {L_WSUM}", "v_add_u32 v9, s72, v8")
    p("s_waitcnt lgkmcnt(0)", "s_barrier")
    for t in range(3): p(f"ds_write_b32 v9, v{48+t} offset:{512*t}")
    stats_dot2(p, 1)
    p("s_waitcnt lgkmcnt(0)", "s_barrier")
    p(f"v_add_u32 v8, {L_WSUM}, v8")
    for t in range(3): p(f"ds_read_b128 {v(24+4*t,4)}, v8 offset:{512*t}")
    w_frag_dump(p)
    p(*w_tr_reads(16, 0))
    stamp(p, "p1.h2")
    steps(16, 32)
    Lp = p.lab("kzp"); Lx = p.lab("kzx")
    p("s_waitcnt vmcnt(2)", "v_cmp_eq_u32 vcc, 0, v43", f"s_cbranch_vccz {Lx}", "s_mov_b32 s73, 0")
    p(f"{Lp}:")
    p(f"buffer_load_dword v43, v42, s[{R_DBG}:{R_DBG+3}], 0 offen sc1")
    p("s_add_u32 s73, s73, 1", "s_cmp_gt_u32 s73, 0x40000", f"s_cbranch_scc1 {Lx}")
    p("s_waitcnt vmcnt(0)", "v_cmp_eq_u32 vcc, 0, v43", f"s_cbranch_vccnz {Lp}")
    p(f"{Lx}:", "s_waitcnt vmcnt(2)")
    p(f"v_readlane_b32 s{S_NONCE}, v43, 0")
    for t in range(3):
        b = 24+4*t
        p(f"v_add_f32 v{b}, v{b}, v{b+1}", f"v_add_f32 v{b+2}, v{b+2}, v{b+3}", f"v_add_f32 v{b}, v{b}, v{b+2}")
        split_hi_lo(p, b, b+1, b+2, b+3)
        p(f"v_cvt_pk_bf16_f32 v{b+2}, v{b+2}, 0")
        p(f"v_accvgpr_write_b32 a{A_WS+2*t}, v{b+3}", f"v_accvgpr_write_b32 a{A_WS+2*t+1}, v{b+2}")
    p(f"v_accvgpr_write_b32 a{A_WS+6}, 0", f"v_accvgpr_write_b32 a{A_WS+7}, 0")
    p(f"v_add_f32 v2, v{SS}, v{SS+1}", f"v_add_f32 v3, v{SS+2}, v{SS+3}")
    p("v_permlane32_swap_b32 v2, v3", "v_add_f32 v2, v2, v3", "v_mov_b32 v3, v2", "v_permlane32_swap_b32 v2, v3")

def split_hi_lo(p, src, hi, lo, tmp):
    p(f"v_cvt_pk_bf16_f32 v{tmp}, v{src}, v{src}")
    p(f"v_and_b32 v{hi}, 0xffff0000, v{tmp}")
    p(f"v_sub_f32 v{lo}, v{src}, v{hi}")

def softmax_pair(p, P, C, E, out, tmp):
    mx, mn = tmp, tmp+1
    p(f"v_max3_f32 v{mx}, v{P}, v{P+1}, v{P+2}", f"v_min3_f32 v{mn}, v{P}, v{P+1}, v{P+2}")
    for i in range(3, 15, 2):
        p(f"v_max3_f32 v{mx}, v{mx}, v{P+i}, v{P+i+1}", f"v_min3_f32 v{mn}, v{mn}, v{P+i}, v{P+i+1}")
    p(f"v_max_f32 v{mx}, v{mx}, v{P+15}", f"v_min_f32 v{mn}, v{mn}, v{P+15}")
    p(f"v_mov_b32 v{tmp+2}, v{C}", f"v_mov_b32 v{tmp+4}, v{C}")
    p(f"v_mul_f32 v{tmp+3}, v{mx}, v{C}", f"v_mul_f32 v{tmp+5}, v{mn}, v{C}")
    E2 = E + 16
    for i in range(0, 16, 2):
        p(f"v_pk_fma_f32 {v(E+i,2)}, {v(P+i,2)}, {v(tmp+2,2)}, {v(tmp+2,2)} op_sel:[0,0,1] op_sel_hi:[1,0,1] neg_lo:[0,0,1] neg_hi:[0,0,1]")
        p(f"v_pk_fma_f32 {v(E2+i,2)}, {v(P+i,2)}, {v(tmp+4,2)}, {v(tmp+4,2)} op_sel:[0,0,1] op_sel_hi:[1,0,1] neg_lo:[1,0,0] neg_hi:[1,0,0]")
    for i in range(16): p(f"v_exp_f32 v{E+i}, v{E+i}")
    for i in range(16): p(f"v_exp_f32 v{E2+i}, v{E2+i}")
    for half in range(2):
        e = E + 16*half; s0 = out + 8*half
        for i in range(4): p(f"v_pk_add_f32 {v(s0+2*i,2)}, {v(e+4*i,2)}, {v(e+4*i+2,2)}")
    for half in range(2):
        s0 = out + 8*half
        p(f"v_pk_add_f32 {v(s0,2)}, {v(s0,2)}, {v(s0+2,2)}", f"v_pk_add_f32 {v(s0+4,2)}, {v(s0+4,2)}, {v(s0+6,2)}")
    for half in range(2):
        s0 = out + 8*half
        p(f"v_pk_add_f32 {v(s0,2)}, {v(s0,2)}, {v(s0+4,2)}")
    for half in range(2):
        s0 = out + 8*half
        p(f"v_add_f32 v{s0}, v{s0}, v{s0+1}")
    p(f"v_rcp_f32 v{tmp}, v{out}", f"v_rcp_f32 v{tmp+2}, v{out+8}", "s_nop 0")
    for half in range(2):
        e = E + 16*half
        for i in range(0, 16, 2): p(f"v_pk_mul_f32 {v(e+i,2)}, {v(e+i,2)}, {v(tmp+2*half,2)} op_sel_hi:[1,0]")
    for half in range(2):
        e = E + 16*half; s0 = out + 8*half
        for i in range(8): p(f"v_cvt_pk_bf16_f32 v{s0+i}, v{e+2*i}, v{e+2*i+1}")

def wo_dma_groups(p):
    p("v_lshrrev_b32 v41, 2, v1", "v_and_b32 v42, 3, v1", "v_bfe_u32 v43, v1, 4, 1", "v_lshlrev_b32 v43, 1, v43", "v_xor_b32 v42, v42, v43")
    p("v_lshlrev_b32 v41, 10, v41", "v_lshl_add_u32 v41, v42, 4, v41")
    p(f"s_lshl_b32 s{SD0}, s{S_CB}, 8", f"s_lshl_b32 s73, s{S_W}, 6", f"s_add_u32 s{SD0}, s{SD0}, s73")
    p(f"s_lshl_b32 s{SD1}, s{S_W}, 15", f"s_cmp_eq_u32 s{S_W}, 3", f"s_cselect_b32 s{SD1}, {L_X+32768}, s{SD1}")
    return [[f"s_add_u32 m0, s{SD1}, {1024*u}", f"s_add_u32 s{SD2}, s{SD0}, {16384*u}",
             f"buffer_load_dwordx4 v41, s[{R_WO}:{R_WO+3}], s{SD2} offen lds"] for u in range(32)]

def wo_reads(p):
    p.c("wo fragments -> a[0:127]")
    p("v_lshrrev_b32 v2, 4, v1", "v_bfe_u32 v3, v1, 2, 2", "v_lshl_add_u32 v3, v2, 2, v3", "v_lshlrev_b32 v3, 6, v3")
    p("v_and_b32 v2, 1, v2", "v_lshlrev_b32 v2, 1, v2", "v_bfe_u32 v4, v1, 1, 1")
    p("v_xor_b32 v5, v4, v2", "v_lshl_add_u32 v7, v5, 4, v3")
    p("v_add_u32 v4, 2, v4", "v_xor_b32 v5, v4, v2", "v_lshl_add_u32 v8, v5, 4, v3")
    p("v_and_b32 v4, 1, v1", "v_lshl_add_u32 v7, v4, 3, v7", "v_lshl_add_u32 v8, v4, 3, v8")
    p(f"s_lshl_b32 s74, s{S_W}, 15", f"s_cmp_eq_u32 s{S_W}, 3", f"s_cselect_b32 s74, {L_X+32768}, s74", "v_add_u32 v7, s74, v7", "v_add_u32 v8, s74, v8")
    for s_ in range(16):
        for ct in range(2):
            d = A_WO + 8*s_ + 4*ct
            p(f"ds_read_b64_tr_b16 {a(d,2)}, v{7+ct} offset:{2048*s_}", f"ds_read_b64_tr_b16 {a(d+2,2)}, v{7+ct} offset:{2048*s_+1024}")
        if s_ % 2 == 1: p("s_waitcnt lgkmcnt(6)")
    p("s_waitcnt lgkmcnt(0)")

def attn_epilogue(p, layer):
    KV = WS_KV1 if layer == 1 else WS_KV2
    Z = WS_Z1 if layer == 1 else WS_Z2
    PHI = WS_PHI1 if layer == 1 else WS_PHI2
    p.c(f"attention epilogue, layer {layer}")
    q = Prog(); q.uid = p.uid
    main_p = p; p = q
    if layer == 1:
        p("v_lshlrev_b32 v8, 4, v1", f"v_add_u32 v8, {L_WPH}, v8", f"ds_write_b128 v8, {v(V_WPH,4)}")
        p("v_lshrrev_b32 v8, 4, v1", "v_bfe_u32 v9, v1, 2, 2", "v_and_b32 v10, 3, v1", "v_lshrrev_b32 v11, 1, v8")
        p("v_lshl_add_u32 v9, v11, 3, v9", "v_lshlrev_b32 v9, 5, v9")
        p("v_and_b32 v11, 1, v10", "v_lshl_add_u32 v9, v11, 9, v9")
        p("v_and_b32 v8, 1, v8", "v_lshrrev_b32 v10, 1, v10", "v_lshl_add_u32 v8, v8, 1, v10", "v_lshl_add_u32 v9, v8, 3, v9", f"v_add_u32 v9, {L_WPH}, v9")
    p("v_mul_f32 v4, 0x3b000000, v2")
    p("v_mul_f32 v5, 0x3b000000, v3", "v_fma_f32 v5, -v4, v4, v5", "v_add_f32 v5, 0x3727c5ac, v5", "v_rsq_f32 v6, v5")
    p("v_sub_f32 v7, 0, v4")
    if layer == 1:
        p("s_waitcnt lgkmcnt(0)", "ds_read_b64_tr_b16 v[36:37], v9", "ds_read_b64_tr_b16 v[38:39], v9 offset:128")
    split_hi_lo(p, 7, 8, 9, 10)
    p("v_cvt_pk_bf16_f32 v12, v8, v9", "v_cvt_pk_bf16_f32 v13, v8, 0", "v_mov_b32 v14, 0", "v_mov_b32 v15, 0")
    p("v_cmp_gt_u32 vcc, 32, v1", f"v_mul_f32 v16, s{S_LOG2E}, v6", "s_nop 0", "v_cndmask_b32 v12, 0, v12, vcc", "v_cndmask_b32 v13, 0, v13, vcc")
    p("v_and_b32 v2, 31, v1", f"s_lshl_b32 s72, s{S_W}, 5", "v_add_u32 v2, s72, v2", "v_lshlrev_b32 v2, 5, v2")
    p(f"v_mfma_f32_32x32x16_bf16 {v(AK,16)}, {a(A_WS+2,4)}, v[12:15], {v(AK,16)}")
    p("v_lshrrev_b32 v3, 5, v1", f"v_lshl_add_u32 v18, v3, 13, v2", f"v_add_u32 v18, {L_PK}, v18")
    p(f"v_mfma_f32_32x32x16_bf16 {v(AV,16)}, {a(A_WS+4,4)}, v[12:15], {v(AV,16)}")
    p(f"v_lshl_add_u32 v19, v3, 12, v2", f"v_add_u32 v19, {L_V}, v19")
    p(f"v_mfma_f32_32x32x16_bf16 {v(AQ,16)}, {a(A_WS,4)}, v[12:15], {v(AQ,16)}")
    if layer == 1:
        p("v_bfe_u32 v40, v1, 2, 1", "v_cmp_eq_u32 vcc, 0, v40", "s_waitcnt lgkmcnt(0)", "s_nop 0")
        for j in range(4):
            p(f"v_cndmask_b32 v2, 0, v{36+j}, vcc", f"v_sub_u32 v3, v{36+j}, v2")
            p(f"v_accvgpr_write_b32 a{A_PHI+j}, v2", f"v_accvgpr_write_b32 a{A_PHI+4+j}, v3")
    stamp(p, f"e{layer}.corr")
    KB = 128; QB = 136; PK = 144; PQ = 208; VB = 192
    for i in range(8): p(f"v_cvt_pk_bf16_f32 v{KB+i}, v{AK+2*i}, v{AK+2*i+1}")
    p(f"v_mfma_f32_32x32x16_bf16 {v(PK,16)}, {a(A_PHI,4)}, {v(KB,4)}, 0")
    p(f"v_mfma_f32_32x32x16_bf16 {v(PK,16)}, {a(A_PHI+4,4)}, {v(KB+4,4)}, {v(PK,16)}")
    for i in range(16): p(f"v_mul_f32 v{AV+i}, v{AV+i}, v6")
    for i in range(8): p(f"v_cvt_pk_bf16_f32 v{VB+i}, v{AV+2*i}, v{AV+2*i+1}")
    p(f"ds_write_b128 v19, {v(VB,4)}", f"ds_write_b128 v19, {v(VB+4,4)} offset:16")
    for i in range(8): p(f"v_cvt_pk_bf16_f32 v{QB+i}, v{AQ+2*i}, v{AQ+2*i+1}")
    p(f"v_mfma_f32_32x32x16_bf16 {v(PQ,16)}, {a(A_PHI,4)}, {v(QB,4)}, 0")
    p(f"v_mfma_f32_32x32x16_bf16 {v(PQ,16)}, {a(A_PHI+4,4)}, {v(QB+4,4)}, {v(PQ,16)}")
    E = 160; OUT = 224
    softmax_pair(p, PK, 16, E, OUT, 20)
    p(f"ds_write_b128 v18, {v(OUT,4)}", f"ds_write_b128 v18, {v(OUT+4,4)} offset:16")
    p(f"ds_write_b128 v18, {v(OUT+8,4)} offset:4096", f"ds_write_b128 v18, {v(OUT+12,4)} offset:4112")
    p("v_lshrrev_b32 v2, 4, v1", "v_bfe_u32 v3, v1, 2, 2", "v_lshl_add_u32 v3, v2, 2, v3", "v_lshlrev_b32 v3, 5, v3")
    p("v_and_b32 v4, 3, v1", "v_lshl_add_u32 v3, v4, 3, v3")
    p(f"s_lshr_b32 s72, s{S_W}, 1", f"s_lshl_b32 s73, s72, 12", f"s_add_u32 s73, s73, {L_V}", "v_add_u32 v19, s73, v3")
    p(f"s_lshl_b32 s73, s{S_W}, 12", f"s_add_u32 s73, s73, {L_PK}", "v_add_u32 v18, s73, v3")
    stamp(p, f"e{layer}.ksm")
    p("s_waitcnt lgkmcnt(0)", "s_barrier")
    stamp(p, f"e{layer}.kbar")
    DK = 128; DZ = 132; ON = 136; FA = 96
    for ks in range(4):
        fa = FA + 8*ks
        p(f"ds_read_b64_tr_b16 {v(fa,2)}, v18 offset:{1024*ks}", f"ds_read_b64_tr_b16 {v(fa+2,2)}, v18 offset:{1024*ks+512}")
        p(f"ds_read_b64_tr_b16 {v(fa+4,2)}, v19 offset:{1024*ks}", f"ds_read_b64_tr_b16 {v(fa+6,2)}, v19 offset:{1024*ks+512}")
        if ks == 2: p("s_waitcnt lgkmcnt(8)")
    for i in range(4): p(f"v_mov_b32 v{ON+i}, s{S_ONES}")
    p("v_and_b32 v2, 15, v1", "v_lshrrev_b32 v3, 5, v1", "v_lshl_add_u32 v2, v3, 4, v2", "v_lshlrev_b32 v2, 4, v2")
    p("v_bfe_u32 v3, v1, 4, 1", "v_lshl_add_u32 v2, v3, 9, v2")
    p(f"s_lshl_b32 s73, s{S_W}, 10", f"s_add_u32 s73, s73, {L_KVT}", "v_add_u32 v2, s73, v2")
    p("v_lshlrev_b32 v3, 2, v1", "v_add_u32 v4, s73, v3")
    for ks in range(4):
        fa = FA + 8*ks
        p(f"s_waitcnt lgkmcnt({12-4*ks if ks > 0 else 8})" if ks < 3 else "s_waitcnt lgkmcnt(0)")
        p(f"v_mfma_f32_16x16x32_bf16 {v(DK,4)}, {v(fa,4)}, {v(fa+4,4)}, {'0' if ks == 0 else v(DK,4)}")
        p(f"v_mfma_f32_16x16x32_bf16 {v(DZ,4)}, {v(ON,4)}, {v(fa,4)}, {'0' if ks == 0 else v(DZ,4)}")
    qs = sub(p, softmax_pair, PQ, 16, E, OUT, 20)
    for l in qs[:18]: p(l)
    p(f"ds_write_b128 v2, {v(DK,4)}")
    for l in qs[18:36]: p(l)
    p("s_waitcnt lgkmcnt(0)")
    for i in range(4): p(f"ds_read_b32 v{140+i}, v4 offset:{256*i}")
    p(f"s_lshl_b32 s74, s{S_HP}, 1", f"s_lshr_b32 s75, s{S_W}, 1", "s_add_u32 s74, s74, s75")
    p(f"s_lshl_b32 s76, s74, 11", f"s_and_b32 s75, s{S_W}, 1", "s_lshl_b32 s77, s75, 9", "s_add_u32 s76, s76, s77", f"s_add_u32 s76, s76, {KV}")
    for l in qs[36:52]: p(l)
    main_lines = q.lines; main_p.uid = q.uid
    p = main_p
    if layer == 1:
        p("s_barrier")
        groups = wo_dma_groups(p)
        interleave(p, main_lines, groups, 9, start=4)
    else:
        for l in main_lines: p.lines.append(l)
    p("s_waitcnt lgkmcnt(0)")
    p("v_lshlrev_b32 v3, 2, v1")
    for i in range(4):
        p(f"buffer_atomic_add_f32 v{140+i}, v3, s[{R_WS}:{R_WS+3}], s76 offen offset:{(i&1)*256 + (i>>1)*1024}")
    p(f"s_lshl_b32 s76, s74, 7", "s_lshl_b32 s77, s75, 6", "s_add_u32 s76, s76, s77", f"s_add_u32 s76, s76, {Z}")
    p("s_mov_b32 exec_lo, 0xffff", "s_mov_b32 exec_hi, 0")
    p(f"buffer_atomic_add_f32 v{DZ}, v3, s[{R_WS}:{R_WS+3}], s76 offen")
    p("s_mov_b64 exec, -1")
    stamp(p, f"e{layer}.kv")
    for l in qs[52:]: p(l)
    p("v_and_b32 v2, 15, v1", "v_lshlrev_b32 v2, 4, v2", "v_lshrrev_b32 v3, 4, v1", "v_lshl_add_u32 v2, v3, 10, v2")
    p(f"s_lshl_b32 s74, s{S_RB}, 2", f"s_add_u32 s74, s74, s{S_W}", "s_lshl_b32 s74, s74, 16", f"s_lshl_b32 s75, s{S_HP}, 12", "s_add_u32 s74, s74, s75", f"s_add_u32 s74, s74, {PHI}")
    for c_ in range(4):
        p(f"buffer_store_dwordx4 {v(OUT+4*c_,4)}, v2, s[{R_WS}:{R_WS+3}], s74 offen offset:{256*c_} sc1")

def grid_arrive(p, epoch):
    p.c(f"grid barrier {epoch}: arrive")
    p("s_waitcnt vmcnt(0) lgkmcnt(0)", "s_barrier")
    L = p.lab("arr")
    p(f"s_cmp_lg_u32 s{S_W}, 0", f"s_cbranch_scc1 {L}")
    p(f"s_add_u32 s72, s{S_NONCE}, {epoch}", "s_lshl_b32 s73, s2, 7", "v_mov_b32 v2, s72", "v_mov_b32 v3, s73", "s_mov_b64 exec, 1")
    p(f"buffer_store_dword v2, v3, s[{R_WS}:{R_WS+3}], 0 offen sc0 sc1", "s_mov_b64 exec, -1")
    p(f"{L}:")

def grid_wait(p, epoch):
    p.c(f"grid barrier {epoch}: wait")
    Lp = p.lab("gw"); Lx = p.lab("gx")
    p("s_waitcnt vmcnt(0) lgkmcnt(0)")
    p("v_lshlrev_b32 v2, 7, v0", f"s_add_u32 s72, s{S_NONCE}, {epoch}", "s_mov_b32 s73, 0")
    p(f"{Lp}:")
    p(f"buffer_load_dword v3, v2, s[{R_WS}:{R_WS+3}], 0 offen sc1")
    p("s_add_u32 s73, s73, 1", "s_cmp_gt_u32 s73, 0x40000", f"s_cbranch_scc1 {Lx}")
    p("s_waitcnt vmcnt(0)", "v_subrev_u32 v3, s72, v3", "v_cmpx_le_u32 vcc, 8, v3", f"s_cbranch_execz {Lx}", "s_sleep 1", f"s_branch {Lp}")
    p(f"{Lx}:", "s_waitcnt vmcnt(0)", "s_mov_b64 exec, -1", "s_barrier")

def res_load(p, layer):
    if layer == 1:
        p("v_and_b32 v2, 15, v1", "v_lshlrev_b32 v2, 11, v2", "v_lshrrev_b32 v3, 4, v1", "v_lshl_add_u32 v2, v3, 3, v2")
        p(f"s_lshl_b32 s72, s{S_TB}, 15", f"s_lshl_b32 s73, s{S_CB}, 8", "s_add_u32 s72, s72, s73", f"s_lshl_b32 s73, s{S_W}, 6", "s_add_u32 s72, s72, s73")
        for ct in range(2):
            for tt in range(2):
                p(f"buffer_load_dwordx2 {v(RES+4*ct+2*tt,2)}, v2, s[{R_X0}:{R_X0+3}], s72 offen offset:{32*ct+1024*tt}")
    else:
        p("v_and_b32 v2, 15, v1", "v_lshlrev_b32 v2, 4, v2", "v_lshrrev_b32 v3, 4, v1", "v_lshl_add_u32 v2, v3, 14, v2")
        for ct in range(2):
            p(f"s_lshl_b32 s72, s{S_CB}, 5", f"s_lshl_b32 s73, s{S_W}, 3", "s_add_u32 s72, s72, s73", f"s_add_u32 s72, s72, {4*ct}", "s_lshl_b32 s72, s72, 14")
            p(f"s_lshl_b32 s73, s{S_TB}, 8", "s_add_u32 s72, s72, s73", f"s_add_u32 s72, s72, {WS_X2}")
            p(f"buffer_load_dwordx4 {v(RES+4*ct,4)}, v2, s[{R_WS}:{R_WS+3}], s72 offen sc1")

def p2_body(p, layer):
    KV = WS_KV1 if layer == 1 else WS_KV2
    Z = WS_Z1 if layer == 1 else WS_Z2
    PHI = WS_PHI1 if layer == 1 else WS_PHI2
    XO = WS_X1 if layer == 1 else WS_X3
    STT = WS_ST1 if layer == 1 else WS_ST2
    p.c(f"================ P2 (layer {layer}) ================")
    KF = 128; PF = 192; KB = 40; ZF = 72
    p("v_lshlrev_b32 v2, 4, v1")
    p(f"s_lshl_b32 s72, s{S_W}, 10", f"s_add_u32 s72, s72, {Z}")
    p(f"buffer_load_dwordx4 v[4:7], v2, s[{R_WS}:{R_WS+3}], s72 offen sc1")
    p(f"s_lshl_b32 s{SD0}, s{S_W}, 14", f"s_add_u32 s{SD0}, s{SD0}, {KV}")
    p(f"s_lshl_b32 s{SD1}, s{S_TB}, 16", f"s_lshl_b32 s74, s{S_W}, 14", f"s_add_u32 s{SD1}, s{SD1}, s74", f"s_add_u32 s{SD1}, s{SD1}, {PHI}")
    def loads(hh):
        p(f"s_add_u32 s{SD2}, s{SD0}, {2048*hh}", f"s_add_u32 s{SD3}, s{SD1}, {2048*hh}")
        p(f"buffer_load_dwordx4 {v(KF+8*hh,4)}, v2, s[{R_WS}:{R_WS+3}], s{SD2} offen sc1")
        p(f"buffer_load_dwordx4 {v(PF+8*hh,4)}, v2, s[{R_WS}:{R_WS+3}], s{SD3} offen sc1")
        p(f"buffer_load_dwordx4 {v(KF+8*hh+4,4)}, v2, s[{R_WS}:{R_WS+3}], s{SD2} offen offset:1024 sc1")
        p(f"buffer_load_dwordx4 {v(PF+8*hh+4,4)}, v2, s[{R_WS}:{R_WS+3}], s{SD3} offen offset:1024 sc1")
    for hh in range(4): loads(hh)
    p(f"s_lshl_b32 s74, s{S_W}, 9", f"s_add_u32 s74, s74, {L_ZL}", "v_lshlrev_b32 v3, 3, v1", "v_add_u32 v3, s74, v3")
    p("v_lshrrev_b32 v8, 4, v1", "v_lshlrev_b32 v8, 4, v8", "v_add_u32 v8, s74, v8")
    p(f"v_add_u32 v9, {L_OL}, v2", f"s_lshl_b32 s74, s{S_W}, 13", "v_add_u32 v9, s74, v9")
    stamp(p, f"p2{layer}.issued")
    p("s_waitcnt vmcnt(16)")
    p("v_cvt_pk_bf16_f32 v4, v4, v5", "v_cvt_pk_bf16_f32 v5, v6, v7", "ds_write_b64 v3, v[4:5]")
    p("s_waitcnt lgkmcnt(0)")
    for hh in range(8): p(f"ds_read_b128 {v(ZF+4*hh,4)}, v8 offset:{64*hh}")
    NB = (12, 112)
    issued = 17
    def stageA(hh):
        need = 1 + 4*(hh+1)
        p(f"s_waitcnt vmcnt({issued - need})")
        k = KF + 8*hh
        for j in range(4): p(f"v_cvt_pk_bf16_f32 v{KB+4*hh+j}, v{k+2*j}, v{k+2*j+1}")
        if hh == 0: p("s_waitcnt lgkmcnt(0)")
        else: p("s_nop 0")
        nb = NB[hh & 1]
        for tt in range(2):
            p(f"v_mfma_f32_16x16x32_bf16 {v(nb+8*tt+4,4)}, {v(ZF+4*hh,4)}, {v(PF+8*hh+4*tt,4)}, 0")
        for tt in range(2):
            p(f"v_mfma_f32_16x16x32_bf16 {v(nb+8*tt,4)}, {v(KB+4*hh,4)}, {v(PF+8*hh+4*tt,4)}, 0")
    def stageB(hh):
        nb = NB[hh & 1]
        for tt in range(2): p(f"v_add_f32 v{nb+8*tt+4}, 0x358637bd, v{nb+8*tt+4}")
        for tt in range(2): p(f"v_rcp_f32 v{nb+8*tt+4}, v{nb+8*tt+4}")
        for tt in range(2):
            for r in range(4): p(f"v_mul_f32 v{nb+8*tt+r}, v{nb+8*tt+r}, v{nb+8*tt+4}")
        for tt in range(2):
            ob = 28 + 4*tt + 2*(hh & 1)
            p(f"v_cvt_pk_bf16_f32 v{ob}, v{nb+8*tt}, v{nb+8*tt+1}", f"v_cvt_pk_bf16_f32 v{ob+1}, v{nb+8*tt+2}, v{nb+8*tt+3}")
        if hh & 1:
            p(f"ds_write_b128 v9, v[28:31] offset:{(hh>>1)*2048}", f"ds_write_b128 v9, v[32:35] offset:{(hh>>1)*2048+1024}")
    stageA(0)
    for hh in range(8):
        if hh + 4 < 8: loads(hh+4); issued += 4
        if hh + 1 < 8: stageA(hh+1)
        stageB(hh)
    stamp(p, f"p2{layer}.prep")
    p("s_waitcnt lgkmcnt(0)", "s_barrier")
    stamp(p, f"p2{layer}.obar")
    AC = 12; BF = 128
    p(f"v_add_u32 v9, {L_OL}, v2")
    def mf(t):
        for ct in range(2):
            for tt in range(2):
                acc = AC + 8*ct + 4*tt
                p(f"v_mfma_f32_16x16x32_bf16 {v(acc,4)}, {a(A_WO+8*t+4*ct,4)}, {v(BF+8*t+4*tt,4)}, {'0' if t == 0 else v(acc,4)}")
    for s_ in range(16):
        p(f"ds_read_b128 {v(BF+8*s_,4)}, v9 offset:{2048*s_}", f"ds_read_b128 {v(BF+8*s_+4,4)}, v9 offset:{2048*s_+1024}")
        if s_ >= 3:
            p("s_waitcnt lgkmcnt(6)"); mf(s_-3)
    p("v_and_b32 v2, 15, v1", "v_lshlrev_b32 v2, 4, v2", "v_lshrrev_b32 v3, 4, v1", "v_lshl_add_u32 v4, v3, 14, v2", "v_lshl_add_u32 v5, v3, 2, v2")
    for t in range(13, 16):
        p(f"s_waitcnt lgkmcnt({2*(15-t)})"); mf(t)
    stamp(p, f"p2{layer}.gemm")
    T = 40
    for ct in range(2):
        for tt in range(2):
            r = RES + 4*ct + 2*tt; t0 = T + 8*ct + 4*tt
            p(f"v_lshlrev_b32 v{t0}, 16, v{r}", f"v_and_b32 v{t0+1}, s{S_HIM}, v{r}", f"v_lshlrev_b32 v{t0+2}, 16, v{r+1}", f"v_and_b32 v{t0+3}, s{S_HIM}, v{r+1}")
    for ct in range(2):
        p(f"s_lshl_b32 s72, s{S_CB}, 5", f"s_lshl_b32 s73, s{S_W}, 3", "s_add_u32 s72, s72, s73", f"s_add_u32 s72, s72, {4*ct}", "s_lshl_b32 s72, s72, 14")
        p(f"s_lshl_b32 s73, s{S_TB}, 8", "s_add_u32 s72, s72, s73", f"s_add_u32 s{SD0+ct}, s72, {XO}")
    for ct in range(2):
        for tt in range(2):
            acc = AC + 8*ct + 4*tt; t0 = T + 8*ct + 4*tt
            p(f"v_pk_add_f32 {v(acc,2)}, {v(acc,2)}, {v(t0,2)}", f"v_pk_add_f32 {v(acc+2,2)}, {v(acc+2,2)}, {v(t0+2,2)}")
    for ct in range(2):
        o = 56 + 4*ct
        for tt in range(2):
            acc = AC + 8*ct + 4*tt
            p(f"v_cvt_pk_bf16_f32 v{o+2*tt}, v{acc}, v{acc+1}", f"v_cvt_pk_bf16_f32 v{o+2*tt+1}, v{acc+2}, v{acc+3}")
        p(f"buffer_store_dwordx4 {v(o,4)}, v4, s[{R_WS}:{R_WS+3}], s{SD0+ct} offen sc1")
    for tt in range(2):
        a0 = AC + 4*tt; a1 = AC + 8 + 4*tt
        p(f"v_pk_add_f32 v[48:49], {v(a0,2)}, {v(a0+2,2)}", f"v_pk_add_f32 v[50:51], {v(a1,2)}, {v(a1+2,2)}")
        p(f"v_pk_mul_f32 v[52:53], {v(a0,2)}, {v(a0,2)}", f"v_pk_fma_f32 v[52:53], {v(a0+2,2)}, {v(a0+2,2)}, v[52:53]")
        p("v_pk_add_f32 v[48:49], v[48:49], v[50:51]")
        p(f"v_pk_fma_f32 v[52:53], {v(a1,2)}, {v(a1,2)}, v[52:53]", f"v_pk_fma_f32 v[52:53], {v(a1+2,2)}, {v(a1+2,2)}, v[52:53]")
        p(f"v_add_f32 v{44+2*tt}, v48, v49", f"v_add_f32 v{45+2*tt}, v52, v53")
    p("s_nop 0", "v_permlane32_swap_b32 v44, v46", "v_permlane32_swap_b32 v45, v47", "v_add_f32 v44, v44, v46", "v_add_f32 v45, v45, v47")
    p(f"s_lshl_b32 s72, s{S_TB}, 8", f"s_add_u32 s72, s72, {STT}")
    p("v_permlane16_swap_b32 v44, v45", "v_add_f32 v44, v44, v45")
    p(f"buffer_atomic_add_f32 v44, v5, s[{R_WS}:{R_WS+3}], s72 offen")

def kfrag(kp):
    return a(FR_A+4*kp,4) if kp < NFA else v(FR_V+4*(kp-NFA),4)
def kfrag2(kp, h):
    return a(FR_A+4*kp+2*h,2) if kp < NFA else v(FR_V+4*(kp-NFA)+2*h,2)

def r_build(p):
    p.c("expand table T -> reversed kernel R (resident)")
    p("v_lshlrev_b32 v2, 3, v0", "v_sub_u32 v2, 2047, v2")
    for i in range(8): p(f"v_subrev_u32 v{24+i}, {i}, v2")
    for i in range(8): p(f"v_cvt_f32_i32 v{32+i}, v{24+i}")
    for i in range(8): p(f"v_cvt_pk_bf16_f32 v{32+i}, v{32+i}, v{32+i}")
    for i in range(8): p(f"v_and_b32 v{32+i}, 0xffff, v{32+i}")
    for i in range(8): p(f"v_subrev_u32 v{32+i}, 17024, v{32+i}")
    p("s_mov_b32 s76, 128")
    for i in range(8):
        p(f"v_cmp_gt_i32 s[{72+2*(i&1)}:{73+2*(i&1)}], s76, v{24+i}")
        if i > 0: p(f"v_cndmask_b32 v{32+i-1}, v{32+i-1}, v{24+i-1}, s[{72+2*((i-1)&1)}:{73+2*((i-1)&1)}]")
    p("s_nop 1", "v_cndmask_b32 v39, v39, v31, s[74:75]")
    for i in range(8): p(f"v_lshlrev_b32 v{8+i}, 1, v{32+i}")
    for i in range(8): p(f"v_add_u32 v{8+i}, {L_T}, v{8+i}")
    p("v_lshlrev_b32 v6, 4, v0", f"v_add_u32 v6, {L_R}, v6")
    p("s_waitcnt lgkmcnt(0)", "s_barrier")
    for ch in range(4):
        b = 24 + 8*(ch & 1)
        for i in range(8): p(f"ds_read_u16 v{b+i}, v{8+i} offset:{T_STRIDE*ch}")
        if ch > 0:
            pb = 24 + 8*((ch-1) & 1)
            p("s_waitcnt lgkmcnt(8)")
            for k in range(4): p(f"v_lshl_or_b32 v{40+k}, v{pb+2*k+1}, 16, v{pb+2*k}")
            p(f"ds_write_b128 v6, v[40:43] offset:{R_STRIDE*(ch-1)}")
    p("s_waitcnt lgkmcnt(0)")
    for k in range(4): p(f"v_lshl_or_b32 v{44+k}, v{32+2*k+1}, 16, v{32+2*k}")
    p(f"ds_write_b128 v6, v[44:47] offset:{R_STRIDE*3}")
    p("v_mov_b32 v36, 0", "v_mov_b32 v37, 0", "v_mov_b32 v38, 0", "v_mov_b32 v39, 0")
    p("v_lshrrev_b32 v2, 1, v0", f"v_mul_u32_u24 v2, {R_STRIDE}, v2", "v_and_b32 v3, 1, v0", "v_lshl_add_u32 v2, v3, 4, v2", f"v_add_u32 v2, {L_R+4096}, v2")
    p("v_cmp_gt_u32 vcc, 8, v0", "s_and_saveexec_b64 s[76:77], vcc")
    Lz = p.lab("rz")
    p(f"s_cbranch_execz {Lz}", "ds_write_b128 v2, v[36:39]", f"{Lz}:", "s_mov_b64 exec, s[76:77]")

def conv_prep(p):
    p.c("shifted copies of K, Toeplitz fragments")
    p("s_waitcnt lgkmcnt(0)", "s_barrier")
    p("v_lshlrev_b32 v6, 4, v0", f"v_add_u32 v7, {L_R}, v6")
    for ch in range(4):
        b = 8 + 8*ch
        p(f"ds_read_b128 {v(b,4)}, v7 offset:{R_STRIDE*ch}", f"ds_read_b64 {v(b+4,2)}, v7 offset:{R_STRIDE*ch+16}")
    p("v_mov_b32 v56, 0", "v_mov_b32 v57, 0", "v_mov_b32 v58, 0", "v_mov_b32 v59, 0")
    p("v_lshrrev_b32 v2, 1, v0", f"v_mul_u32_u24 v2, {CP_COPY}, v2", "v_and_b32 v3, 1, v0", "v_lshl_add_u32 v2, v3, 4, v2", f"v_add_u32 v2, {L_CP+4096}, v2")
    p("v_lshrrev_b32 v4, 5, v0", f"v_mul_u32_u24 v4, {U_CH}, v4", "v_and_b32 v3, 31, v0", "v_lshl_add_u32 v4, v3, 4, v4", f"v_add_u32 v4, {L_U}, v4")
    p("v_cmp_gt_u32 vcc, 32, v0", "s_and_saveexec_b64 s[76:77], vcc")
    Lz = p.lab("cz")
    p(f"s_cbranch_execz {Lz}", "ds_write_b128 v2, v[56:59]", f"{Lz}:", "s_mov_b64 exec, s[76:77]")
    p("v_cmp_gt_u32 vcc, 128, v0", "s_and_saveexec_b64 s[76:77], vcc")
    Lz = p.lab("uz")
    p(f"s_cbranch_execz {Lz}", "ds_write_b128 v4, v[56:59]", f"{Lz}:", "s_mov_b64 exec, s[76:77]")
    for ch in range(4):
        b = 8 + 8*ch
        p(f"s_waitcnt lgkmcnt({2*(3-ch)+2})" if ch < 3 else "s_waitcnt lgkmcnt(2)") if False else None
    p("s_waitcnt lgkmcnt(0)")
    for ch in range(4):
        b = 8 + 8*ch; base = L_CP + CP_CH*ch
        for k in range(4): p(f"v_alignbyte_b32 v{44+k}, v{b+k+1}, v{b+k}, 2", f"v_alignbyte_b32 v{48+k}, v{b+k+2}, v{b+k+1}, 2")
        for k in range(4): p(f"v_mov_b32 v{52+k}, v{b+k+1}")
        p(f"v_add_u32 v5, {base}, v6")
        p(f"ds_write_b128 v5, {v(b,4)} offset:{3*CP_COPY}", f"ds_write_b128 v5, v[44:47] offset:{2*CP_COPY}")
        p(f"ds_write_b128 v5, v[48:51]", f"ds_write_b128 v5, v[52:55] offset:{1*CP_COPY}")
    p("v_and_b32 v2, 3, v1", f"v_mul_u32_u24 v2, {CP_COPY}, v2", "v_and_b32 v3, 12, v1", "v_sub_u32 v3, 28, v3")
    p("v_lshrrev_b32 v4, 5, v1", "v_lshlrev_b32 v4, 4, v4", "v_sub_u32 v3, v3, v4", "v_bfe_u32 v4, v1, 4, 1", "v_lshl_add_u32 v3, v4, 3, v3")
    p("v_lshl_add_u32 v2, v3, 1, v2", f"s_mul_i32 s72, s{S_W}, {CP_CH}", f"s_add_u32 s72, s72, {L_CP}", "v_add_u32 v2, s72, v2")
    stamp(p, "cp.copies")
    p("s_waitcnt lgkmcnt(0)", "s_barrier")
    for kp in range(64):
        p(f"ds_read_b64 {kfrag2(kp,0)}, v2 offset:{64*(63-kp)}", f"ds_read_b64 {kfrag2(kp,1)}, v2 offset:{64*(63-kp)+8}")
        if kp % 4 == 3: p("s_waitcnt lgkmcnt(6)")
    p("s_waitcnt lgkmcnt(0)")

def conv_body(p, layer):
    XI = WS_X1 if layer == 1 else WS_X3
    STT = WS_ST1 if layer == 1 else WS_ST2
    p.c(f"================ conv (layer {layer}) ================")
    XR = 64; SR = 80
    p("v_lshrrev_b32 v2, 7, v0", "v_and_b32 v3, 127, v0", "v_lshlrev_b32 v3, 1, v3")
    for o in range(2):
        p(f"s_xor_b32 s72, s{S_HS}, {o}", "s_cmp_eq_u32 s72, 0", "s_cselect_b32 s73, 3, 1")
        p("v_mul_u32_u24 v4, s73, v2", "v_add_u32 v4, s72, v4", f"v_lshl_add_u32 v{6+o}, v4, 8, v3")
    p(f"s_lshl_b32 s72, s{S_CG}, 14", f"s_add_u32 s72, s72, {XI}", f"s_mov_b32 s73, {STT}")
    for o in range(2): p(f"v_lshlrev_b32 v{8+o}, 3, v{6+o}")
    for o in range(2): p(f"v_add_u32 v{10+o}, 8192, v{8+o}")
    for k in range(4):
        o = k >> 1; vr = 8+o if (k & 1) == 0 else 10+o
        p(f"buffer_load_dwordx4 {v(SR+4*k,4)}, v{vr}, s[{R_WS}:{R_WS+3}], s73 offen sc1")
        p(f"buffer_load_dwordx4 {v(XR+4*k,4)}, v{vr}, s[{R_WS}:{R_WS+3}], s72 offen sc1")
    for o in range(2): p(f"v_lshlrev_b32 v{12+o}, 1, v{6+o}", f"v_add_u32 v{12+o}, {L_U+512}, v{12+o}")
    stamp(p, f"c{layer}.issued")
    XK = 16; UK = 32
    for k in range(4):
        o = k >> 1
        sr = SR + 4*k; xr = XR + 4*k
        p(f"s_waitcnt vmcnt({7-2*k})")
        for t in range(2):
            S1 = sr + 2*t; S2 = S1 + 1
            p(f"v_mul_f32 v{S1}, 0x3b000000, v{S1}", f"v_mul_f32 v{S2}, 0x3b000000, v{S2}")
        for t in range(2):
            S1 = sr + 2*t; S2 = S1 + 1
            p(f"v_fma_f32 v{S2}, -v{S1}, v{S1}, v{S2}")
        for t in range(2): p(f"v_add_f32 v{sr+2*t+1}, 0x3727c5ac, v{sr+2*t+1}")
        for t in range(2): p(f"v_rsq_f32 v{44+2*t}, v{sr+2*t+1}")
        p(f"s_waitcnt vmcnt({6-2*k})")
        xb = XK + 8*k if k < 2 else 48
        for t in range(2):
            for h in range(2):
                p(f"v_lshlrev_b32 v{xb+4*t+2*h}, 16, v{xr+2*t+h}", f"v_and_b32 v{xb+4*t+2*h+1}, s{S_HIM}, v{xr+2*t+h}")
        for t in range(2): p(f"v_mul_f32 v{45+2*t}, v{sr+2*t}, v{44+2*t}")
        for t in range(2):
            for h in range(2):
                p(f"v_pk_fma_f32 {v(56+4*t+2*h,2)}, {v(xb+4*t+2*h,2)}, {v(44+2*t,2)}, {v(44+2*t,2)} op_sel:[0,0,1] op_sel_hi:[1,0,1] neg_lo:[0,0,1] neg_hi:[0,0,1]")
        ub = UK + 4*k if k < 2 else 40
        for c_ in range(4): p(f"v_cvt_pk_bf16_f32 v{ub+c_}, v{56+c_}, v{60+c_}")
        for c_ in range(4): p(f"ds_write_b32 v{12+o}, v{ub+c_} offset:{U_CH*c_ + 2048*(k&1)}")
    p("v_and_b32 v2, 15, v1", "v_lshrrev_b32 v3, 5, v1", "v_sub_u32 v2, v2, v3", "v_lshlrev_b32 v2, 5, v2", "v_bfe_u32 v3, v1, 4, 1", "v_lshl_add_u32 v2, v3, 4, v2")
    p(f"s_mul_i32 s72, s{S_W}, {U_CH}", f"s_add_u32 s72, s72, {L_U+64}", "v_add_u32 v2, s72, v2")
    stamp(p, f"c{layer}.ln")
    p("s_waitcnt lgkmcnt(0)", "s_barrier")
    stamp(p, f"c{layer}.ubar")
    ACC = 96
    Lb = p.lab("hsB"); Le = p.lab("hsE")
    p(f"s_cmp_eq_u32 s{S_HS}, 0", f"s_cbranch_scc0 {Lb}")
    for hs, hl in ((0, (0,3,4,7)), (1, (1,2,5,6))):
        if hs == 1: p(f"{Lb}:")
        jmax = max(hl); first = set()
        def bread(r, j): p(f"ds_read_b128 {v(64+4*j,4)}, v2 offset:{64*(8*j-r+7)}")
        for j in range(jmax+1): bread(0, j)
        for r in range(8):
            js = list(range(jmax+1))
            grp = [js[i:i+2] for i in range(0, len(js), 2)]
            for g in grp:
                if r < 7 or True:
                    if r == 7:
                        later = (jmax + 1) - (g[-1] + 1)
                    else:
                        later = (jmax + 1) - len(g)
                    p(f"s_waitcnt lgkmcnt({later})")
                for j in g:
                    for h in hl:
                        if h >= j:
                            acc = ACC + 4*hl.index(h)
                            c_ = "0" if h not in first else v(acc,4); first.add(h)
                            p(f"v_mfma_f32_16x16x32_bf16 {v(acc,4)}, {kfrag(8*(h-j)+r)}, {v(64+4*j,4)}, {c_}")
                if r < 7:
                    for j in g: bread(r+1, j)
        if hs == 0: p(f"s_branch {Le}")
    p(f"{Le}:")
    p("v_and_b32 v2, 15, v1", "v_lshlrev_b32 v2, 6, v2", "v_lshrrev_b32 v3, 4, v1", "v_lshl_add_u32 v2, v3, 4, v2")
    p(f"s_lshl_b32 s72, s{S_W}, 12", f"s_add_u32 s72, s72, {L_Y}", "v_add_u32 v2, s72, v2")
    p("v_lshrrev_b32 v3, 7, v0", "v_and_b32 v4, 127, v0", "v_lshlrev_b32 v4, 3, v4", "v_lshl_add_u32 v3, v3, 10, v4", f"v_add_u32 v3, {L_Y}, v3")
    stamp(p, f"c{layer}.mfma")
    for q in range(4): p(f"ds_write_b128 v2, {v(ACC+4*q,4)} offset:{1024*q}")
    for k in range(2):
        xb = XK + 8*k; ub = UK + 4*k
        for c_ in range(4):
            p(f"v_lshlrev_b32 v44, 16, v{ub+c_}", f"v_and_b32 v45, s{S_HIM}, v{ub+c_}")
            p(f"v_fma_f32 v{xb+c_}, v44, s{S_D0+c_}, v{xb+c_}", f"v_fma_f32 v{xb+4+c_}, v45, s{S_D0+c_}, v{xb+4+c_}")
    if layer == 1:
        p(f"s_lshl_b32 s72, s{S_CG}, 14", f"s_add_u32 s72, s72, {WS_X2}", "s_add_u32 s73, s72, 8192")
    else:
        p(f"v_lshlrev_b32 v10, 10, v6", f"s_lshl_b32 s72, s{S_CG}, 3", f"s_add_u32 s73, s72, {1024*1024}")
    p("s_waitcnt lgkmcnt(0)", "s_barrier")
    for k in range(2):
        for c_ in range(4): p(f"ds_read_b64 {v(64+8*k+2*c_,2)}, v3 offset:{4096*c_ + 2048*k}")
    for k in range(2):
        p(f"s_waitcnt lgkmcnt({4 if k == 0 else 0})")
        y = 64 + 8*k; xb = XK + 8*k
        for c_ in range(4):
            p(f"v_add_f32 v{y+2*c_}, v{y+2*c_}, v{xb+c_}", f"v_add_f32 v{y+2*c_+1}, v{y+2*c_+1}, v{xb+4+c_}")
        o_ = 48 + 4*k
        p(f"v_cvt_pk_bf16_f32 v{o_}, v{y}, v{y+2}", f"v_cvt_pk_bf16_f32 v{o_+1}, v{y+4}, v{y+6}")
        p(f"v_cvt_pk_bf16_f32 v{o_+2}, v{y+1}, v{y+3}", f"v_cvt_pk_bf16_f32 v{o_+3}, v{y+5}, v{y+7}")
        if layer == 1:
            p(f"buffer_store_dwordx4 {v(o_,4)}, v8, s[{R_WS}:{R_WS+3}], s{72+k} offen sc1")
        else:
            p(f"buffer_store_dwordx2 {v(o_,2)}, v10, s[{R_OUT}:{R_OUT+3}], s{72+k} offen")
            p(f"buffer_store_dwordx2 {v(o_+2,2)}, v10, s[{R_OUT}:{R_OUT+3}], s{72+k} offen offset:1024")

def w_reload(p):
    p("v_lshlrev_b32 v2, 4, v1")
    p(f"s_mul_i32 s72, s{S_HP}, 98304", f"s_mul_i32 s73, s{S_W}, 24576", "s_add_u32 s72, s72, s73", f"s_add_u32 s72, s72, {WS_WF}")
    for u in range(24):
        p(f"s_add_u32 m0, s73, {1024*u}", f"s_add_u32 s74, s72, {1024*u}")
        p(f"buffer_load_dwordx4 v2, s[{R_WS}:{R_WS+3}], s74 offen sc1 lds")

def p4_main(p):
    p.c("================ P4 ================")
    GR = 28; WB3 = 44
    p("v_and_b32 v2, 15, v1", "v_lshlrev_b32 v2, 4, v2", "v_lshrrev_b32 v3, 4, v1", "v_lshl_add_u32 v2, v3, 14, v2")
    p(f"s_lshl_b32 s72, s{S_RB}, 10", f"s_lshl_b32 s73, s{S_W}, 8", "s_add_u32 s72, s72, s73", f"s_add_u32 s{SD0}, s72, {WS_X2}")
    p("v_lshlrev_b32 v6, 4, v1", "v_add_u32 v7, 49152, v6", "v_mov_b32 v12, 0", "v_mov_b32 v13, 0")
    def xload(s_):
        p(f"s_add_u32 s{SD1}, s{SD0}, {65536*s_}", f"buffer_load_dwordx4 {v(XF+4*s_,4)}, v2, s[{R_WS}:{R_WS+3}], s{SD1} offen sc1")
    def wread(s_):
        b = WB3 + 12*(s_ % 3); r = 6 if s_ < 16 else 7; o = (s_ % 16)*3072
        return [f"ds_read_b128 {v(b+4*t,4)}, v{r} offset:{o+1024*t}" for t in range(3)]
    NPRE = 14
    for s_ in range(NPRE): xload(s_)
    p(*wread(0)); p(*wread(1))
    stamp(p, "p4.issued")
    issued = NPRE
    def swaps(s_):
        x = XF + 4*s_
        p(f"s_waitcnt vmcnt({issued - (s_+1)})", f"v_permlane16_swap_b32 v{x}, v{x+2}", f"v_permlane16_swap_b32 v{x+1}, v{x+3}")
    swaps(0)
    for s_ in range(32):
        b = WB3 + 12*(s_ % 3); x = XF + 4*s_
        rd = wread(s_+2) if s_+2 < 32 else ["", "", ""]
        ops = []
        for j in range(4):
            lo = 8 + 2*(j & 1)
            ops += [f"v_lshlrev_b32 v{lo}, 16, v{x+j}", f"v_and_b32 v{lo+1}, s{S_HIM}, v{x+j}", f"v_add_f32 v12, v12, v{lo}", f"v_add_f32 v13, v13, v{lo+1}"]
        z = (lambda A: "0" if s_ == 0 else v(A,16))
        nout = 3 if s_+1 < 32 else 0
        p(f"s_waitcnt lgkmcnt({nout})")
        p(f"v_mfma_f32_32x32x16_bf16 {v(AQ,16)}, {v(b,4)}, {v(x,4)}, {z(AQ)}"); p(rd[0]); p(*ops[0:4])
        if issued < 32: xload(issued); issued += 1
        p(f"v_mfma_f32_32x32x16_bf16 {v(AK,16)}, {v(b+4,4)}, {v(x,4)}, {z(AK)}"); p(rd[1]); p(*ops[4:8])
        p(f"v_mfma_f32_32x32x16_bf16 {v(AV,16)}, {v(b+8,4)}, {v(x,4)}, {z(AV)}"); p(rd[2]); p(*ops[8:12])
        p(f"v_mfma_f32_32x32x16_bf16 {v(GR,16)}, {v(x,4)}, {v(x,4)}, {z(GR)}")
        if s_ < 31: swaps(s_+1)
        p(*ops[12:16])
    p("v_add_f32 v12, v12, v13", "v_and_b32 v8, 1, v1", "v_and_b32 v9, 2, v1", "v_and_b32 v10, 8, v1", "v_and_b32 v11, 16, v1")
    p("v_cmp_ne_u32 s[72:73], 0, v8", "v_cmp_ne_u32 s[74:75], 0, v9", "v_cmp_ne_u32 s[76:77], 0, v10", "v_cmp_ne_u32 vcc, 0, v11")
    p("v_mov_b32 v13, v12", "v_and_b32 v8, 4, v1", "v_permlane32_swap_b32 v12, v13")
    for k in range(8): p(f"v_cndmask_b32 v{GR+k}, v{GR+2*k}, v{GR+2*k+1}, s[72:73]")
    for k in range(4): p(f"v_cndmask_b32 v{GR+k}, v{GR+2*k}, v{GR+2*k+1}, s[74:75]")
    for k in range(2): p(f"v_cndmask_b32 v{GR+k}, v{GR+2*k}, v{GR+2*k+1}, s[76:77]")
    p(f"v_cndmask_b32 v{GR}, v{GR}, v{GR+1}, vcc", "v_cmp_ne_u32 vcc, 0, v8", "v_add_f32 v2, v12, v13")
    p(f"v_mov_b32 v9, v{GR}", "s_nop 0", f"v_permlane32_swap_b32 v{GR}, v9")
    p(f"v_cndmask_b32 v3, v{GR}, v9, vcc")

def finish(p):
    p("s_waitcnt vmcnt(0)")
    p("Lend:", "s_endpgm")

def build(stop):
    p = Prog()
    prologue(p)
    stamp(p, "start")
    p1(p); stamp(p, "p1gemm"); attn_epilogue(p, 1); stamp(p, "p1epi")
    if stop != "p1":
        grid_arrive(p, 1); stamp(p, "arr1")
        wo_reads(p); stamp(p, "w1.wo"); res_load(p, 1)
        p("s_barrier")
        kgen_b(p)
        stamp(p, "win1")
        grid_wait(p, 1); stamp(p, "bar1")
        p2_body(p, 1); stamp(p, "p21.end")
    if stop not in ("p1", "p2"):
        grid_arrive(p, 2); stamp(p, "arr2")
        r_build(p); stamp(p, "w2.r"); conv_prep(p); stamp(p, "win2")
        grid_wait(p, 2); stamp(p, "bar2")
        conv_body(p, 1); stamp(p, "c1.end")
    if stop not in ("p1", "p2", "p3"):
        grid_arrive(p, 3); stamp(p, "arr3")
        w_reload(p)
        grid_wait(p, 3); stamp(p, "bar3")
        p4_main(p); stamp(p, "p4.gemm"); attn_epilogue(p, 2); stamp(p, "p4.epi")
        grid_arrive(p, 4); stamp(p, "arr4")
        res_load(p, 2)
        grid_wait(p, 4); stamp(p, "bar4")
        p2_body(p, 2)
        grid_arrive(p, 5); stamp(p, "arr5")
        conv_prep(p); stamp(p, "w5.prep")
        grid_wait(p, 5); stamp(p, "bar5")
        conv_body(p, 2)
    p("s_waitcnt vmcnt(0)"); stamp(p, "end")
    stamp_dump(p)
    finish(p)
    return wrap(p.finalize(verbose=VERB))

VERB = False
if __name__ == "__main__":
    stop = sys.argv[1] if len(sys.argv) > 1 else "all"
    out = sys.argv[2] if len(sys.argv) > 2 else "k_all.s"
    PROF = "prof" in sys.argv[3:]
    for x in sys.argv[3:]:
        if x.startswith("sel="): STAMP_SEL = set(x[4:].split(","))
    VERB = "v" in sys.argv[3:]
    open(out, "w").write(build(stop))
    if PROF: open(out + ".names", "w").write(",".join(STAMP_NAMES))
```

```python
import sys, os
sys.path.insert(0, os.path.dirname(os.path.abspath(__file__)))
from asmlib import *
from kern import *

WS_FLAGS = 0x0
WS_KV1   = 0x10000
WS_Z1    = 0x20000
WS_ZERO  = 0x30000
WS_KV2   = 0x30000
WS_Z2    = 0x40000
WS_ST1   = 0x44000
WS_ST2   = 0x48000
WS_WF    = 0x100000
WS_PHI1  = 0x400000
WS_PHI2  = 0x800000
WS_X1    = 0xC00000
WS_X2    = 0xE00000
WS_X3    = 0x1000000
WS_DUMP  = 0x2000000
WS_SIZE  = 0x10000000

S_WG=2; S_W=3; S_XCD=4; S_I=5; S_RB=6; S_HP=7
R_WS=8; R_X0=12; R_WQ=16; R_T=20; R_OUT=24; R_DBG=28; R_WO=32
P_X0=36; P_WQKV=38; P_WPHI=40; P_WO=42; P_LAR=46; P_AIM=48; P_CR=50; P_CI=52; P_LDT=54; P_DSK=56; P_OUT=58; P_DBG=60; P_WSP=62
S_NONCE=64; S_ONES=65; S_LOG2E=66
ST=70

L_W=0; L_X=98304
L_PK=L_X; L_V=L_X+16384; L_KVT=L_X+24576; L_WPH=L_X+28672; L_WSUM=L_X+61440
L_KS=0
L_T=L_X+36864; T_STRIDE=1312
L_R=147328; R_STRIDE=4128
L_CP=0; CP_COPY=4160; CP_CH=16640
L_U=L_X; U_CH=4608; L_Y=L_X+20480
L_OL=L_X; L_ZL=L_X+32768
SD0=36; SD1=37; SD2=38; SD3=39

PROF = False
CLK = False
_stamp = [0]
STAMP_NAMES = []
STAMP_SEL = None
def stamp(p, name):
    if not PROF: return
    if STAMP_SEL is not None and name not in STAMP_SEL: return
    if STAMP_SEL is None and "." in name: return
    k = _stamp[0]; _stamp[0] += 1; STAMP_NAMES.append(name)
    assert k < 16
    p("s_waitcnt lgkmcnt(0)", "s_memrealtime s[78:79]", "s_waitcnt lgkmcnt(0)", f"s_mov_b32 s{80+k}, s78")
    if CLK:
        k = _stamp[0]; _stamp[0] += 1; STAMP_NAMES.append(name + "#clk")
        p("s_memtime s[78:79]", "s_waitcnt lgkmcnt(0)", f"s_mov_b32 s{80+k}, s78")
DBGSTAMP = None
def stamp_dump(p):
    if not PROF: return
    if DBGSTAMP is not None:
        L = p.lab("sdd")
        p(f"s_cmp_lg_u32 s{S_W}, 0", f"s_cbranch_scc1 {L}", f"s_cmp_lg_u32 s2, {DBGSTAMP}", f"s_cbranch_scc1 {L}")
        n = _stamp[0]
        for k in range(1, n):
            p(f"s_sub_u32 s72, s{80+k}, s80", "v_mov_b32 v4, s72", f"v_mov_b32 v2, {4*k}", "s_mov_b64 exec, 1")
            p(f"buffer_store_dword v4, v2, s[{R_DBG}:{R_DBG+3}], 0 offen", "s_mov_b64 exec, -1")
        p(f"{L}:")
        return
    L = p.lab("sd")
    p(f"s_cmp_lg_u32 s{S_W}, 0", f"s_cbranch_scc1 {L}")
    for k in range(16): p(f"v_mov_b32 v{4+k}, s{80+k}")
    p("s_lshl_b32 s72, s2, 6", f"s_add_u32 s72, s72, {WS_DUMP}", "v_mov_b32 v2, 0", "s_mov_b64 exec, 1")
    for k in range(4): p(f"buffer_store_dwordx4 {v(4+4*k,4)}, v2, s[{R_WS}:{R_WS+3}], s72 offen offset:{16*k}")
    p("s_mov_b64 exec, -1", f"{L}:")

def srd(p, dst, ptr, size):
    p(f"s_mov_b32 s{dst}, s{ptr}", f"s_mov_b32 s{dst+1}, s{ptr+1}", f"s_mov_b32 s{dst+2}, {size}", f"s_mov_b32 s{dst+3}, 0x20000")


def sub(p, fn, *a, **k):
    q = Prog(); q.uid = p.uid
    fn(q, *a, **k); p.uid = q.uid
    return q.lines

def interleave(p, main, groups, every, start=0):
    gi = 0; n = 0
    for l in main:
        p.lines.append(l)
        if l.startswith(";") or l.endswith(":"): continue
        n += 1
        if n >= start and (n - start) % every == 0 and gi < len(groups):
            for g in groups[gi]: p(g)
            gi += 1
    while gi < len(groups):
        for g in groups[gi]: p(g)
        gi += 1

def hexf(x):
    import struct
    return hex(struct.unpack("<I", struct.pack("<f", float(x)))[0])

def prologue(p):
    p("s_cmp_ge_u32 s2, 256", "s_cbranch_scc1 Lend")
    p("s_load_dwordx16 s[36:51], s[0:1], 0", "s_load_dwordx8 s[52:59], s[0:1], 64", "s_load_dwordx4 s[60:63], s[0:1], 96")
    p("s_memrealtime s[70:71]")
    p("v_and_b32 v1, 63, v0", "v_lshrrev_b32 v2, 6, v0")
    p(f"s_and_b32 s{S_XCD}, s2, 7", f"s_lshr_b32 s{S_I}, s2, 3")
    p(f"v_readfirstlane_b32 s{S_W}, v2")
    p(f"s_lshr_b32 s72, s{S_XCD}, 1", "s_lshl_b32 s72, s72, 2", f"s_and_b32 s73, s{S_I}, 3", f"s_add_u32 s{S_RB}, s72, s73")
    p(f"s_and_b32 s72, s{S_XCD}, 1", "s_lshl_b32 s72, s72, 3", f"s_lshr_b32 s73, s{S_I}, 2", f"s_add_u32 s{S_HP}, s72, s73")
    p(f"s_lshl_b32 s{S_TB}, s{S_XCD}, 3", f"s_lshr_b32 s72, s{S_I}, 2", f"s_add_u32 s{S_TB}, s{S_TB}, s72", f"s_and_b32 s{S_CB}, s{S_I}, 3")
    p(f"s_lshl_b32 s{S_CG}, s{S_XCD}, 4", f"s_lshr_b32 s72, s{S_I}, 1", f"s_add_u32 s{S_CG}, s{S_CG}, s72", f"s_and_b32 s{S_HS}, s{S_I}, 1")
    p(f"s_mov_b32 s{S_ONES}, 0x3f803f80", f"s_mov_b32 s{S_LOG2E}, 0x3fb8aa3b")
    p("v_mov_b32 v4, 0", "v_mov_b32 v5, 0", "v_mov_b32 v6, 0", "v_mov_b32 v7, 0", "v_lshlrev_b32 v3, 4, v1")
    p("s_waitcnt lgkmcnt(0)")
    p(f"s_mov_b32 s{S_HIM}, 0xffff0000")
    srd(p, R_WS, P_WSP, WS_SIZE); srd(p, R_X0, P_X0, 2097152); srd(p, R_WQ, P_WQKV, 1572864)
    srd(p, R_OUT, P_OUT, 2097152); srd(p, R_DBG, P_DBG, 256); srd(p, R_WO, P_WO, 524288)
    L = p.lab("z"); L2 = p.lab("z2"); L3 = p.lab("z3")
    p(f"s_cmp_lg_u32 s{S_RB}, 0", f"s_cbranch_scc1 {L2}")
    p(f"s_lshl_b32 s72, s{S_HP}, 12", f"s_lshl_b32 s73, s{S_W}, 10", "s_add_u32 s72, s72, s73", f"s_add_u32 s72, s72, {WS_KV1}")
    p(f"buffer_store_dwordx4 v[4:7], v3, s[{R_WS}:{R_WS+3}], s72 offen sc1")
    p(f"s_lshl_b32 s72, s{S_HP}, 8", f"s_add_u32 s72, s72, {WS_Z1}")
    p("s_mov_b32 exec_lo, 0xffff", "s_mov_b32 exec_hi, 0")
    p(f"buffer_store_dwordx4 v[4:7], v3, s[{R_WS}:{R_WS+3}], s72 offen sc1")
    p("s_mov_b64 exec, -1")
    p(f"{L2}:")
    p(f"s_cmp_lg_u32 s{S_W}, 0", f"s_cbranch_scc1 {L}")
    p("s_lshl_b32 s72, s2, 9", f"s_add_u32 s72, s72, {WS_ZERO}")
    p("s_mov_b32 exec_lo, -1", "s_mov_b32 exec_hi, 0")
    p(f"buffer_store_dwordx4 v[4:7], v3, s[{R_WS}:{R_WS+3}], s72 offen sc1")
    p("s_mov_b64 exec, -1")
    p("s_cmp_lg_u32 s2, 0", f"s_cbranch_scc1 {L3}")
    p("s_or_b32 s70, s70, 0x80000000", "s_and_b32 s70, s70, 0xfffffff8", "v_mov_b32 v8, s70", "v_mov_b32 v9, 0")
    p("s_mov_b64 exec, 1")
    p(f"buffer_store_dword v8, v9, s[{R_DBG}:{R_DBG+3}], 0 offen sc0 sc1")
    p("s_mov_b64 exec, -1")
    p(f"{L3}:")
    p(f"{L}:")

XF=128
AQ, AK, AV = 80, 96, 112
WB=56
SS=52
A_PHI=240; A_WS=248
V_TRQ=44; V_TRQ2=45; V_TRV=46; V_TRV2=47
V_WPH=36
S_TB=67; S_CB=68; S_CG=69; S_HS=96; S_D0=97; S_HIM=44
A_WO=0; RES=104
KP=80
A_KG=128
FR_A=128; FR_V=112; NFA=28

def cmul(p, R, X, W, T):
    p(f"v_pk_mul_f32 {v(T,2)}, {v(X,2)}, {v(W,2)} op_sel_hi:[1,0]")
    p(f"v_pk_fma_f32 {v(R,2)}, {v(X,2)}, {v(W,2)}, {v(T,2)} op_sel:[1,1,0] op_sel_hi:[0,1,1] neg_lo:[1,0,0]")

def cexp(p, R, za, zw, mult, T):
    p(f"v_mul_f32 v{T}, {hexf(mult)}, v{za}", f"v_mul_f32 v{T+1}, {hexf(mult)}, v{zw}")
    p(f"v_exp_f32 v{T}, v{T}", f"v_fract_f32 v{T+1}, v{T+1}")
    p(f"v_cos_f32 v{R}, v{T+1}", f"v_sin_f32 v{R+1}, v{T+1}", "s_nop 0")
    p(f"v_pk_mul_f32 {v(R,2)}, {v(R,2)}, {v(T,2)} op_sel_hi:[1,0]")

def exp_bf16(p, d, src, t):
    p(f"v_mul_f32 v{t}, s{S_LOG2E}, v{src}")
    p(f"v_fma_f32 v{t+1}, v{src}, s{S_LOG2E}, -v{t}")
    p(f"v_mov_b32 v{d}, 0x32a57060", f"v_fma_f32 v{t+1}, v{src}, v{d}, v{t+1}")
    p(f"v_exp_f32 v{t}, v{t}", f"v_mul_f32 v{t+1}, 0x3f317218, v{t+1}")
    p(f"v_fma_f32 v{t}, v{t}, v{t+1}, v{t}")
    p(f"v_cvt_pk_bf16_f32 v{d}, v{t}, v{t}", f"v_and_b32 v{d}, 0xffff0000, v{d}")

def kgen_loads(p):
    p(f"s_lshl_b32 s72, s{S_CG}, 2", f"s_add_u32 s72, s72, s{S_W}")
    p("s_lshl_b32 s73, s72, 8", "s_lshl_b32 s74, s72, 1", "v_lshlrev_b32 v2, 1, v1", "v_mov_b32 v3, 0")
    for k, ptr in enumerate((P_LAR, P_AIM, P_CR, P_CI)):
        srd(p, R_T, ptr, 131072)
        for hf in range(2):
            p(f"buffer_load_ushort v{KP+2*k+hf}, v2, s[{R_T}:{R_T+3}], s73 offen offset:{128*hf}")
    srd(p, R_T, P_LDT, 1024)
    p(f"buffer_load_ushort v{KP+8}, v3, s[{R_T}:{R_T+3}], s74 offen")
    srd(p, R_T, P_DSK, 1024)
    p(f"s_lshl_b32 s74, s{S_CG}, 3", "v_and_b32 v4, 3, v1", "v_lshlrev_b32 v4, 1, v4")
    p(f"buffer_load_ushort v{KP+9}, v4, s[{R_T}:{R_T+3}], s74 offen")
    srd(p, R_T, P_WPHI, 16384)
    p(f"s_lshl_b32 s72, s{S_HP}, 10", "v_lshlrev_b32 v2, 4, v1")
    p(f"buffer_load_dwordx4 {v(V_WPH,4)}, v2, s[{R_T}:{R_T+3}], s72 offen")

def kgen_a(p):
    for i in range(10): p(f"v_lshlrev_b32 v{KP+i}, 16, v{KP+i}")
    for c_ in range(4): p(f"v_readlane_b32 s{S_D0+c_}, v{KP+9}, {c_}")
    DT = 90; t = 92
    exp_bf16(p, DT, KP+8, t)
    W1, W8, W256, W2, W4, X, Y, T, B, C0, ZA = 94, 96, 98, 100, 102, 104, 106, 108, 110, 112, 114
    PK_ = 116
    for hf in range(2):
        exp_bf16(p, 91, KP+hf, t)
        p(f"v_mul_f32 v91, v91, v{DT}", f"v_mul_f32 v{ZA}, s{S_LOG2E}, v91", f"v_sub_f32 v{ZA}, 0, v{ZA}")
        p(f"v_mul_f32 v{ZA+1}, v{KP+2+hf}, v{DT}", f"v_mul_f32 v{ZA+1}, 0.15915494, v{ZA+1}")
        p(f"v_mul_f32 v{C0}, v{KP+4+hf}, v{DT}", f"v_mul_f32 v{C0+1}, v{KP+6+hf}, v{DT}", f"v_pk_add_f32 {v(C0,2)}, {v(C0,2)}, {v(C0,2)}")
        cexp(p, W1, ZA, ZA+1, 1, T); cexp(p, W8, ZA, ZA+1, 8, T); cexp(p, W256, ZA, ZA+1, 256, T)
        cmul(p, W2, W1, W1, T); cmul(p, W4, W2, W2, T)
        def put(row, X_, neg):
            r_ = PK_ + (row & 1)
            p(f"v_cvt_pk_bf16_f32 v{r_}, v{X_}, {'-' if neg else ''}v{X_+1}")
            p(f"v_accvgpr_write_b32 a{A_KG+53*hf+row}, v{r_}")
        fine = Prog(); coarse = Prog()
        q = fine
        def putq(q, row, X_, neg, r_):
            q(f"v_cvt_pk_bf16_f32 v{r_}, v{X_}, {'-' if neg else ''}v{X_+1}")
            q(f"v_accvgpr_write_b32 a{A_KG+53*hf+row}, v{r_}")
        q(f"v_mov_b32 v{Y}, 1.0", f"v_mov_b32 v{Y+1}, 0")
        for beta in range(32):
            putq(q, 21+beta, Y, True, PK_)
            if beta < 31: cmul(q, Y, Y, W8, T)
        q = coarse; T2 = 118; Y2 = 120
        q(f"v_mov_b32 v{X}, v{C0}", f"v_mov_b32 v{X+1}, v{C0+1}")
        for e in range(8):
            putq(q, e, X, False, PK_+1)
            if e < 7: cmul(q, X, X, W1, T2)
        cmul(q, X, C0, W256, T2)
        for e in range(4):
            putq(q, 8+e, X, False, PK_+1)
            if e < 3: cmul(q, X, X, W2, T2)
        cmul(q, B, W256, W256, T2)
        cmul(q, X, C0, B, T2); putq(q, 12, X, False, PK_+1)
        cmul(q, Y2, X, W4, T2); putq(q, 13, Y2, False, PK_+1)
        cmul(q, X, X, W256, T2); putq(q, 14, X, False, PK_+1)
        cmul(q, Y2, X, W4, T2); putq(q, 15, Y2, False, PK_+1)
        cmul(q, B, B, B, T2)
        cmul(q, X, C0, B, T2)
        for e in range(5):
            putq(q, 16+e, X, False, PK_+1)
            if e < 4: cmul(q, X, X, W256, T2)
        f, c = fine.lines, coarse.lines
        i = j = 0
        while i < len(f) or j < len(c):
            if i < len(f): p(f[i]); i += 1
            if j < len(c): p(c[j]); j += 1

def kgen_b(p):
    p.c("K generation part B")
    GA = 48
    p(f"s_mul_i32 s75, s{S_W}, 14464", f"s_add_u32 s75, s75, {L_KS}")
    p("v_lshlrev_b32 v6, 2, v1", "v_add_u32 v6, s75, v6")
    p("v_and_b32 v4, 31, v1", "v_mul_u32_u24 v4, 272, v4", "v_lshrrev_b32 v5, 5, v1", "v_lshl_add_u32 v4, v5, 4, v4", "v_add_u32 v7, s75, v4")
    EA = 0; EB = 21*272
    for hf in range(2):
        for row in range(53):
            p(f"ds_write_b32 v6, a{A_KG+53*hf+row} offset:{row*272}")
            if row % 12 == 11: p("s_waitcnt lgkmcnt(4)")
        p("s_waitcnt lgkmcnt(0)")
        for ks in range(8):
            fa = 64 + 8*(ks & 3)
            p(f"ds_read_b128 {v(fa,4)}, v7 offset:{EA+32*ks}", f"ds_read_b128 {v(fa+4,4)}, v7 offset:{EB+32*ks}")
            if ks >= 3:
                t = ks - 3; fb = 64 + 8*(t & 3)
                p("s_waitcnt lgkmcnt(6)")
                p(f"v_mfma_f32_32x32x16_bf16 {v(GA,16)}, {v(fb,4)}, {v(fb+4,4)}, {'0' if (hf == 0 and t == 0) else v(GA,16)}")
        for t in range(5, 8):
            fb = 64 + 8*(t & 3)
            p(f"s_waitcnt lgkmcnt({2*(7-t)})")
            p(f"v_mfma_f32_32x32x16_bf16 {v(GA,16)}, {v(fb,4)}, {v(fb+4,4)}, {v(GA,16)}")
    p(f"s_mul_i32 s75, s{S_W}, {T_STRIDE}", f"s_add_u32 s75, s75, {L_T}")
    p("v_and_b32 v2, 31, v1", "v_lshrrev_b32 v3, 5, v1", "v_cmp_eq_u32 vcc, 0, v3")
    p("v_lshlrev_b32 v4, 3, v2", "v_lshl_add_u32 v4, v3, 2, v4", "v_lshlrev_b32 v4, 1, v4", "v_add_u32 v8, s75, v4")
    p("v_lshlrev_b32 v4, 2, v2", "v_add_u32 v4, 256, v4", "v_lshlrev_b32 v5, 1, v2", "v_add_u32 v5, 384, v5")
    p("v_cndmask_b32 v9, v5, v4, vcc", "v_lshlrev_b32 v9, 1, v9", "v_add_u32 v9, s75, v9")
    p("v_add_u32 v4, 512, v2", "v_cmp_eq_u32 s[76:77], 32, v1", "v_mov_b32 v5, 646", "v_mov_b32 v10, 640", "v_cndmask_b32 v5, v5, v10, s[76:77]")
    p("v_cndmask_b32 v11, v5, v4, vcc", "v_lshlrev_b32 v11, 1, v11", "v_add_u32 v11, s75, v11")
    p("v_mov_b32 v5, 646", "v_lshlrev_b32 v5, 1, v5", "v_add_u32 v12, s75, v5")
    for b in range(4):
        p(f"v_cvt_pk_bf16_f32 v20, v{GA+b}, v{GA+4+b}", f"v_cvt_pk_bf16_f32 v21, v{GA+8+b}, v{GA+8+b}")
        p(f"ds_write_b16 v8, v20 offset:{2*b}")
        o0 = b; o1 = 64*(b >> 1) + (b & 1)
        if o0 == o1: p(f"ds_write_b16_d16_hi v9, v20 offset:{2*o0}")
        else:
            p(f"v_add_u32 v13, {2*o1}, v9", f"v_add_u32 v14, {2*o0}, v9", "v_cndmask_b32 v13, v13, v14, vcc", "ds_write_b16_d16_hi v13, v20")
        if b == 0: p("ds_write_b16 v11, v21")
        else:
            p(f"v_add_u32 v13, {64*b}, v11", "v_cndmask_b32 v13, v12, v13, vcc", "ds_write_b16 v13, v21")
    p("v_mov_b32 v13, 0", f"v_mov_b32 v14, s75", f"ds_write_b16 v14, v13 offset:{2*641}")

def w_dma_groups(p):
    for u in range(3):
        p(f"v_add_u32 v2, {64*u}, v1", "v_mul_u32_u24 v3, 5462, v2", "v_lshrrev_b32 v3, 16, v3")
        p("v_mul_u32_u24 v6, 12, v3", "v_sub_u32 v6, v2, v6")
        p("v_mul_u32_u24 v3, 3072, v3", "v_lshrrev_b32 v7, 2, v6", "v_lshl_add_u32 v3, v7, 10, v3")
        p("v_and_b32 v6, 3, v6", f"v_lshl_add_u32 v{14+u}, v6, 4, v3")
    p(f"s_mul_i32 s{SD0}, s{S_W}, {128*3072}", f"s_lshl_b32 s73, s{S_HP}, 6", f"s_add_u32 s{SD0}, s{SD0}, s73")
    p(f"s_mul_i32 s{SD1}, s{S_W}, 24576")
    gs = []
    for Gi in range(8):
        for u in range(3):
            g = [f"s_add_u32 m0, s{SD1}, {3072*Gi + 1024*u}", f"s_add_u32 s{SD2}, s{SD0}, {49152*Gi}",
                 f"buffer_load_dwordx4 v{14+u}, s[{R_WQ}:{R_WQ+3}], s{SD2} offen lds"]
            gs.append(g)
    return gs

def x_dma_groups(p, hf):
    p(f"s_lshl_b32 s{SD0}, s{S_RB}, 17", f"s_lshl_b32 s73, s{S_W}, 15", f"s_add_u32 s{SD0}, s{SD0}, s73", f"s_add_u32 s{SD0}, s{SD0}, {hf*512}")
    p(f"s_lshl_b32 s{SD1}, s{S_W}, 14", f"s_add_u32 s{SD1}, s{SD1}, {L_X}")
    gs = []
    for u in range(16):
        gs.append([f"v_xor_b32 v{18+(u&1)}, {u<<4}, v17", f"s_add_u32 m0, s{SD1}, {1024*u}", f"s_add_u32 s{SD2}, s{SD0}, {2048*u}",
                   f"buffer_load_dwordx4 v{18+(u&1)}, s[{R_X0}:{R_X0+3}], s{SD2} offen lds"])
    return gs

def x_frag_reads(p, hf):
    for s_ in range(16):
        t = 22 + (s_ & 1)
        p(f"v_xor_b32 v{t}, {s_<<5}, v20")
        p(f"ds_read_b128 {v(XF + 4*(16*hf + s_), 4)}, v{t}")
        if s_ == 11: p("s_waitcnt lgkmcnt(6)")

def stats_dot2(p, hf):
    for s_ in range(16):
        x = XF + 4*(16*hf + s_)
        for j in range(4):
            p(f"v_dot2_f32_bf16 v{SS+(j&1)}, v{x+j}, s{S_ONES}, v{SS+(j&1)}", f"v_dot2_f32_bf16 v{SS+2+(j&1)}, v{x+j}, v{x+j}, v{SS+2+(j&1)}")

def w_tr_bases(p):
    p("v_lshrrev_b32 v2, 4, v1", "v_bfe_u32 v3, v1, 2, 2", "v_and_b32 v4, 3, v1", "v_lshrrev_b32 v5, 1, v2")
    p("v_lshl_add_u32 v6, v5, 3, v3", "v_mul_u32_u24 v6, 192, v6")
    p("v_and_b32 v2, 1, v2", "v_and_b32 v7, 1, v4", "v_lshrrev_b32 v4, 1, v4")
    p("v_lshlrev_b32 v8, 4, v2", "v_lshl_add_u32 v8, v7, 3, v8", "v_lshl_add_u32 v8, v4, 2, v8", f"v_lshl_add_u32 v{V_TRQ}, v8, 1, v6")
    p("v_lshlrev_b32 v8, 4, v7", "v_lshl_add_u32 v8, v2, 3, v8", "v_lshl_add_u32 v8, v4, 2, v8", f"v_lshl_add_u32 v{V_TRV}, v8, 1, v6")
    p(f"v_add_u32 v{V_TRV}, 128, v{V_TRV}")
    p(f"v_add_u32 v{V_TRQ2}, 49152, v{V_TRQ}", f"v_add_u32 v{V_TRV2}, 49152, v{V_TRV}")

def w_tr_reads(s_, buf, bq=None, bv=None, local=False):
    base = WB + 12*buf
    if local: o = s_*3072; q, vv = bq, bv
    else:
        o = (s_ % 16)*3072
        q = V_TRQ if s_ < 16 else V_TRQ2; vv = V_TRV if s_ < 16 else V_TRV2
    return [f"ds_read_b64_tr_b16 {v(base,2)}, v{q} offset:{o}", f"ds_read_b64_tr_b16 {v(base+2,2)}, v{q} offset:{o+768}",
            f"ds_read_b64_tr_b16 {v(base+4,2)}, v{q} offset:{o+64}", f"ds_read_b64_tr_b16 {v(base+6,2)}, v{q} offset:{o+64+768}",
            f"ds_read_b64_tr_b16 {v(base+8,2)}, v{vv} offset:{o}", f"ds_read_b64_tr_b16 {v(base+10,2)}, v{vv} offset:{o+768}"]

def w_frag_dump(p):
    p(f"s_min_u32 s74, s{S_W}, 2", f"s_mul_i32 s72, s{S_RB}, {2*3072}", "s_lshl_b32 s73, s74, 6")
    p("s_cmp_eq_u32 s74, 2", "s_cselect_b32 s73, 0, s73", "s_cselect_b64 vcc, -1, 0", "s_add_u32 s72, s72, s73")
    p(f"v_cndmask_b32 v2, v{V_TRQ}, v{V_TRV}, vcc", "v_add_u32 v2, s72, v2")
    p("ds_read_b64_tr_b16 v[4:5], v2", "ds_read_b64_tr_b16 v[6:7], v2 offset:768")
    p("ds_read_b64_tr_b16 v[8:9], v2 offset:3072", "ds_read_b64_tr_b16 v[10:11], v2 offset:3840")
    p(f"s_mul_i32 s72, s{S_HP}, 98304", f"s_mul_i32 s73, s{S_RB}, {2*3072}", "s_add_u32 s72, s72, s73", "s_lshl_b32 s73, s74, 10", "s_add_u32 s72, s72, s73", f"s_add_u32 s72, s72, {WS_WF}")
    p("v_lshlrev_b32 v3, 4, v1", "s_waitcnt lgkmcnt(0)")
    p(f"buffer_store_dwordx4 v[4:7], v3, s[{R_WS}:{R_WS+3}], s72 offen sc1")
    p("s_add_u32 s72, s72, 3072")
    p(f"buffer_store_dwordx4 v[8:11], v3, s[{R_WS}:{R_WS+3}], s72 offen sc1")

def p1(p):
    p.c("================ P1 ================")
    kgen_loads(p)
    p("v_lshrrev_b32 v2, 5, v1", "v_and_b32 v3, 31, v1", "v_lshlrev_b32 v3, 4, v3", "v_lshl_add_u32 v17, v2, 10, v3")
    for g in x_dma_groups(p, 0): p(*g)
    wg = w_dma_groups(p)
    w_tr_bases(p)
    p("v_and_b32 v2, 15, v1", "v_bfe_u32 v3, v1, 4, 1", "v_lshl_add_u32 v3, v2, 1, v3", "v_lshlrev_b32 v3, 9, v3")
    p("v_lshrrev_b32 v4, 5, v1", "v_xor_b32 v4, v4, v2", "v_lshl_add_u32 v3, v4, 4, v3")
    p(f"s_lshl_b32 s72, s{S_W}, 14", f"s_add_u32 s72, s72, {L_X}", "v_add_u32 v20, s72, v3")
    for i in range(4): p(f"v_mov_b32 v{SS+i}, 0")
    stamp(p, "p1.issued")
    p("s_waitcnt vmcnt(16)")
    stamp(p, "p1.par")
    ka = sub(p, kgen_a)
    n1 = 24*15
    interleave(p, ka[:n1], wg, 15, start=1)
    stamp(p, "p1.wiss")
    p("s_waitcnt vmcnt(24)")
    x_frag_reads(p, 0)
    p("s_waitcnt lgkmcnt(0)")
    xg = x_dma_groups(p, 1)
    rest = ka[n1:] + sub(p, stats_dot2, 0)
    interleave(p, rest, xg, max(1, len(rest)//17), start=1)
    stamp(p, "p1.x1iss")
    p("s_waitcnt vmcnt(16)")
    stamp(p, "p1.wland")
    p(f"s_mul_i32 s72, s{S_W}, {8*3072}", f"v_add_u32 v2, s72, v{V_TRQ}", f"v_add_u32 v3, s72, v{V_TRV}")
    for t in range(3): p(f"v_mov_b32 v{48+t}, 0")
    p(*w_tr_reads(0, 0, 2, 3, True))
    for i in range(8):
        if i < 7: p(*w_tr_reads(i+1, (i+1) & 1, 2, 3, True))
        p(f"s_waitcnt lgkmcnt({6 if i < 7 else 0})")
        b = WB + 12*(i & 1)
        for j in range(4):
            for t in range(3): p(f"v_dot2_f32_bf16 v{48+t}, v{b+4*t+j}, s{S_ONES}, v{48+t}")
    stamp(p, "p1.wsum")
    p("s_barrier")
    L = p.lab("kz")
    p(f"s_cmp_lg_u32 s{S_RB}, 0", f"s_cbranch_scc1 {L}", f"s_cmp_lg_u32 s{S_W}, 0", f"s_cbranch_scc1 {L}")
    p(f"s_lshl_b32 s72, s{S_HP}, 2", "s_add_u32 s72, s72, 64", "v_mov_b32 v2, s72", "v_mov_b32 v3, 1", "s_mov_b64 exec, 1")
    p(f"buffer_store_dword v3, v2, s[{R_DBG}:{R_DBG+3}], 0 offen sc0 sc1", "s_mov_b64 exec, -1")
    p(f"{L}:")
    p(*w_tr_reads(0, 0))
    def steps(lo, hi):
        for s_ in range(lo, hi):
            b = WB + 12*(s_ & 1); x = XF + 4*s_
            z = (lambda A: "0" if s_ == 0 else v(A,16))
            if s_+1 < hi:
                p(*w_tr_reads(s_+1, (s_+1) & 1)); p("s_waitcnt lgkmcnt(6)")
            else: p("s_waitcnt lgkmcnt(0)")
            p(f"v_mfma_f32_32x32x16_bf16 {v(AQ,16)}, {v(b,4)}, {v(x,4)}, {z(AQ)}")
            p(f"v_mfma_f32_32x32x16_bf16 {v(AK,16)}, {v(b+4,4)}, {v(x,4)}, {z(AK)}")
            p(f"v_mfma_f32_32x32x16_bf16 {v(AV,16)}, {v(b+8,4)}, {v(x,4)}, {z(AV)}")
    stamp(p, "p1.loop0")
    steps(0, 16)
    stamp(p, "p1.half")
    p("s_waitcnt vmcnt(0)")
    x_frag_reads(p, 1)
    p(f"s_lshl_b32 s74, s{S_HP}, 2", "s_add_u32 s74, s74, 64", "v_mov_b32 v42, s74", "v_cmp_eq_u32 vcc, 0, v1", "v_mov_b32 v43, 0", "s_nop 0", "v_cndmask_b32 v42, v42, v43, vcc")
    p(f"buffer_load_dword v43, v42, s[{R_DBG}:{R_DBG+3}], 0 offen sc1")
    for t in range(3): p(f"v_mov_b32 v{8+t}, v{48+t}")
    for t in range(3): p(f"v_permlane32_swap_b32 v{48+t}, v{8+t}")
    for t in range(3): p(f"v_add_f32 v{48+t}, v{48+t}, v{8+t}")
    p("v_and_b32 v8, 31, v1", "v_lshlrev_b32 v8, 4, v8", f"s_lshl_b32 s72, s{S_W}, 2", f"s_add_u32 s72, s72, {L_WSUM}", "v_add_u32 v9, s72, v8")
    p("s_waitcnt lgkmcnt(0)", "s_barrier")
    for t in range(3): p(f"ds_write_b32 v9, v{48+t} offset:{512*t}")
    stats_dot2(p, 1)
    p("s_waitcnt lgkmcnt(0)", "s_barrier")
    p(f"v_add_u32 v8, {L_WSUM}, v8")
    for t in range(3): p(f"ds_read_b128 {v(24+4*t,4)}, v8 offset:{512*t}")
    w_frag_dump(p)
    p(*w_tr_reads(16, 0))
    stamp(p, "p1.h2")
    steps(16, 32)
    Lp = p.lab("kzp"); Lx = p.lab("kzx")
    p("s_waitcnt vmcnt(2)", "v_cmp_eq_u32 vcc, 0, v43", f"s_cbranch_vccz {Lx}", "s_mov_b32 s73, 0")
    p(f"{Lp}:")
    p(f"buffer_load_dword v43, v42, s[{R_DBG}:{R_DBG+3}], 0 offen sc1")
    p("s_add_u32 s73, s73, 1", "s_cmp_gt_u32 s73, 0x40000", f"s_cbranch_scc1 {Lx}")
    p("s_waitcnt vmcnt(0)", "v_cmp_eq_u32 vcc, 0, v43", f"s_cbranch_vccnz {Lp}")
    p(f"{Lx}:", "s_waitcnt vmcnt(2)")
    p(f"v_readlane_b32 s{S_NONCE}, v43, 0")
    for t in range(3):
        b = 24+4*t
        p(f"v_add_f32 v{b}, v{b}, v{b+1}", f"v_add_f32 v{b+2}, v{b+2}, v{b+3}", f"v_add_f32 v{b}, v{b}, v{b+2}")
        split_hi_lo(p, b, b+1, b+2, b+3)
        p(f"v_cvt_pk_bf16_f32 v{b+2}, v{b+2}, 0")
        p(f"v_accvgpr_write_b32 a{A_WS+2*t}, v{b+3}", f"v_accvgpr_write_b32 a{A_WS+2*t+1}, v{b+2}")
    p(f"v_accvgpr_write_b32 a{A_WS+6}, 0", f"v_accvgpr_write_b32 a{A_WS+7}, 0")
    p(f"v_add_f32 v2, v{SS}, v{SS+1}", f"v_add_f32 v3, v{SS+2}, v{SS+3}")
    p("v_permlane32_swap_b32 v2, v3", "v_add_f32 v2, v2, v3", "v_mov_b32 v3, v2", "v_permlane32_swap_b32 v2, v3")

def split_hi_lo(p, src, hi, lo, tmp):
    p(f"v_cvt_pk_bf16_f32 v{tmp}, v{src}, v{src}")
    p(f"v_and_b32 v{hi}, 0xffff0000, v{tmp}")
    p(f"v_sub_f32 v{lo}, v{src}, v{hi}")

def softmax_pair(p, P, C, E, out, tmp):
    mx, mn = tmp, tmp+1
    p(f"v_max3_f32 v{mx}, v{P}, v{P+1}, v{P+2}", f"v_min3_f32 v{mn}, v{P}, v{P+1}, v{P+2}")
    for i in range(3, 15, 2):
        p(f"v_max3_f32 v{mx}, v{mx}, v{P+i}, v{P+i+1}", f"v_min3_f32 v{mn}, v{mn}, v{P+i}, v{P+i+1}")
    p(f"v_max_f32 v{mx}, v{mx}, v{P+15}", f"v_min_f32 v{mn}, v{mn}, v{P+15}")
    p(f"v_mov_b32 v{tmp+2}, v{C}", f"v_mov_b32 v{tmp+4}, v{C}")
    p(f"v_mul_f32 v{tmp+3}, v{mx}, v{C}", f"v_mul_f32 v{tmp+5}, v{mn}, v{C}")
    E2 = E + 16
    for i in range(0, 16, 2):
        p(f"v_pk_fma_f32 {v(E+i,2)}, {v(P+i,2)}, {v(tmp+2,2)}, {v(tmp+2,2)} op_sel:[0,0,1] op_sel_hi:[1,0,1] neg_lo:[0,0,1] neg_hi:[0,0,1]")
        p(f"v_pk_fma_f32 {v(E2+i,2)}, {v(P+i,2)}, {v(tmp+4,2)}, {v(tmp+4,2)} op_sel:[0,0,1] op_sel_hi:[1,0,1] neg_lo:[1,0,0] neg_hi:[1,0,0]")
    for i in range(16): p(f"v_exp_f32 v{E+i}, v{E+i}")
    for i in range(16): p(f"v_exp_f32 v{E2+i}, v{E2+i}")
    for half in range(2):
        e = E + 16*half; s0 = out + 8*half
        for i in range(4): p(f"v_pk_add_f32 {v(s0+2*i,2)}, {v(e+4*i,2)}, {v(e+4*i+2,2)}")
    for half in range(2):
        s0 = out + 8*half
        p(f"v_pk_add_f32 {v(s0,2)}, {v(s0,2)}, {v(s0+2,2)}", f"v_pk_add_f32 {v(s0+4,2)}, {v(s0+4,2)}, {v(s0+6,2)}")
    for half in range(2):
        s0 = out + 8*half
        p(f"v_pk_add_f32 {v(s0,2)}, {v(s0,2)}, {v(s0+4,2)}")
    for half in range(2):
        s0 = out + 8*half
        p(f"v_add_f32 v{s0}, v{s0}, v{s0+1}")
    p(f"v_rcp_f32 v{tmp}, v{out}", f"v_rcp_f32 v{tmp+2}, v{out+8}", "s_nop 0")
    for half in range(2):
        e = E + 16*half
        for i in range(0, 16, 2): p(f"v_pk_mul_f32 {v(e+i,2)}, {v(e+i,2)}, {v(tmp+2*half,2)} op_sel_hi:[1,0]")
    for half in range(2):
        e = E + 16*half; s0 = out + 8*half
        for i in range(8): p(f"v_cvt_pk_bf16_f32 v{s0+i}, v{e+2*i}, v{e+2*i+1}")

def wo_dma_groups(p):
    p("v_lshrrev_b32 v41, 2, v1", "v_and_b32 v42, 3, v1", "v_bfe_u32 v43, v1, 4, 1", "v_lshlrev_b32 v43, 1, v43", "v_xor_b32 v42, v42, v43")
    p("v_lshlrev_b32 v41, 10, v41", "v_lshl_add_u32 v41, v42, 4, v41")
    p(f"s_lshl_b32 s{SD0}, s{S_CB}, 8", f"s_lshl_b32 s73, s{S_W}, 6", f"s_add_u32 s{SD0}, s{SD0}, s73")
    p(f"s_lshl_b32 s{SD1}, s{S_W}, 15", f"s_cmp_eq_u32 s{S_W}, 3", f"s_cselect_b32 s{SD1}, {L_X+32768}, s{SD1}")
    return [[f"s_add_u32 m0, s{SD1}, {1024*u}", f"s_add_u32 s{SD2}, s{SD0}, {16384*u}",
             f"buffer_load_dwordx4 v41, s[{R_WO}:{R_WO+3}], s{SD2} offen lds"] for u in range(32)]

def wo_reads(p):
    p.c("wo fragments -> a[0:127]")
    p("v_lshrrev_b32 v2, 4, v1", "v_bfe_u32 v3, v1, 2, 2", "v_lshl_add_u32 v3, v2, 2, v3", "v_lshlrev_b32 v3, 6, v3")
    p("v_and_b32 v2, 1, v2", "v_lshlrev_b32 v2, 1, v2", "v_bfe_u32 v4, v1, 1, 1")
    p("v_xor_b32 v5, v4, v2", "v_lshl_add_u32 v7, v5, 4, v3")
    p("v_add_u32 v4, 2, v4", "v_xor_b32 v5, v4, v2", "v_lshl_add_u32 v8, v5, 4, v3")
    p("v_and_b32 v4, 1, v1", "v_lshl_add_u32 v7, v4, 3, v7", "v_lshl_add_u32 v8, v4, 3, v8")
    p(f"s_lshl_b32 s74, s{S_W}, 15", f"s_cmp_eq_u32 s{S_W}, 3", f"s_cselect_b32 s74, {L_X+32768}, s74", "v_add_u32 v7, s74, v7", "v_add_u32 v8, s74, v8")
    for s_ in range(16):
        for ct in range(2):
            d = A_WO + 8*s_ + 4*ct
            p(f"ds_read_b64_tr_b16 {a(d,2)}, v{7+ct} offset:{2048*s_}", f"ds_read_b64_tr_b16 {a(d+2,2)}, v{7+ct} offset:{2048*s_+1024}")
        if s_ % 2 == 1: p("s_waitcnt lgkmcnt(6)")
    p("s_waitcnt lgkmcnt(0)")

def attn_epilogue(p, layer):
    KV = WS_KV1 if layer == 1 else WS_KV2
    Z = WS_Z1 if layer == 1 else WS_Z2
    PHI = WS_PHI1 if layer == 1 else WS_PHI2
    p.c(f"attention epilogue, layer {layer}")
    q = Prog(); q.uid = p.uid
    main_p = p; p = q
    if layer == 1:
        p("v_lshlrev_b32 v8, 4, v1", f"v_add_u32 v8, {L_WPH}, v8", f"ds_write_b128 v8, {v(V_WPH,4)}")
        p("v_lshrrev_b32 v8, 4, v1", "v_bfe_u32 v9, v1, 2, 2", "v_and_b32 v10, 3, v1", "v_lshrrev_b32 v11, 1, v8")
        p("v_lshl_add_u32 v9, v11, 3, v9", "v_lshlrev_b32 v9, 5, v9")
        p("v_and_b32 v11, 1, v10", "v_lshl_add_u32 v9, v11, 9, v9")
        p("v_and_b32 v8, 1, v8", "v_lshrrev_b32 v10, 1, v10", "v_lshl_add_u32 v8, v8, 1, v10", "v_lshl_add_u32 v9, v8, 3, v9", f"v_add_u32 v9, {L_WPH}, v9")
    p("v_mul_f32 v4, 0x3b000000, v2")
    p("v_mul_f32 v5, 0x3b000000, v3", "v_fma_f32 v5, -v4, v4, v5", "v_add_f32 v5, 0x3727c5ac, v5", "v_rsq_f32 v6, v5")
    p("v_sub_f32 v7, 0, v4")
    if layer == 1:
        p("s_waitcnt lgkmcnt(0)", "ds_read_b64_tr_b16 v[36:37], v9", "ds_read_b64_tr_b16 v[38:39], v9 offset:128")
    split_hi_lo(p, 7, 8, 9, 10)
    p("v_cvt_pk_bf16_f32 v12, v8, v9", "v_cvt_pk_bf16_f32 v13, v8, 0", "v_mov_b32 v14, 0", "v_mov_b32 v15, 0")
    p("v_cmp_gt_u32 vcc, 32, v1", f"v_mul_f32 v16, s{S_LOG2E}, v6", "s_nop 0", "v_cndmask_b32 v12, 0, v12, vcc", "v_cndmask_b32 v13, 0, v13, vcc")
    p("v_and_b32 v2, 31, v1", f"s_lshl_b32 s72, s{S_W}, 5", "v_add_u32 v2, s72, v2", "v_lshlrev_b32 v2, 5, v2")
    p(f"v_mfma_f32_32x32x16_bf16 {v(AK,16)}, {a(A_WS+2,4)}, v[12:15], {v(AK,16)}")
    p("v_lshrrev_b32 v3, 5, v1", f"v_lshl_add_u32 v18, v3, 13, v2", f"v_add_u32 v18, {L_PK}, v18")
    p(f"v_mfma_f32_32x32x16_bf16 {v(AV,16)}, {a(A_WS+4,4)}, v[12:15], {v(AV,16)}")
    p(f"v_lshl_add_u32 v19, v3, 12, v2", f"v_add_u32 v19, {L_V}, v19")
    p(f"v_mfma_f32_32x32x16_bf16 {v(AQ,16)}, {a(A_WS,4)}, v[12:15], {v(AQ,16)}")
    if layer == 1:
        p("v_bfe_u32 v40, v1, 2, 1", "v_cmp_eq_u32 vcc, 0, v40", "s_waitcnt lgkmcnt(0)", "s_nop 0")
        for j in range(4):
            p(f"v_cndmask_b32 v2, 0, v{36+j}, vcc", f"v_sub_u32 v3, v{36+j}, v2")
            p(f"v_accvgpr_write_b32 a{A_PHI+j}, v2", f"v_accvgpr_write_b32 a{A_PHI+4+j}, v3")
    stamp(p, f"e{layer}.corr")
    KB = 128; QB = 136; PK = 144; PQ = 208; VB = 192
    for i in range(8): p(f"v_cvt_pk_bf16_f32 v{KB+i}, v{AK+2*i}, v{AK+2*i+1}")
    p(f"v_mfma_f32_32x32x16_bf16 {v(PK,16)}, {a(A_PHI,4)}, {v(KB,4)}, 0")
    p(f"v_mfma_f32_32x32x16_bf16 {v(PK,16)}, {a(A_PHI+4,4)}, {v(KB+4,4)}, {v(PK,16)}")
    for i in range(16): p(f"v_mul_f32 v{AV+i}, v{AV+i}, v6")
    for i in range(8): p(f"v_cvt_pk_bf16_f32 v{VB+i}, v{AV+2*i}, v{AV+2*i+1}")
    p(f"ds_write_b128 v19, {v(VB,4)}", f"ds_write_b128 v19, {v(VB+4,4)} offset:16")
    for i in range(8): p(f"v_cvt_pk_bf16_f32 v{QB+i}, v{AQ+2*i}, v{AQ+2*i+1}")
    p(f"v_mfma_f32_32x32x16_bf16 {v(PQ,16)}, {a(A_PHI,4)}, {v(QB,4)}, 0")
    p(f"v_mfma_f32_32x32x16_bf16 {v(PQ,16)}, {a(A_PHI+4,4)}, {v(QB+4,4)}, {v(PQ,16)}")
    E = 160; OUT = 224
    softmax_pair(p, PK, 16, E, OUT, 20)
    p(f"ds_write_b128 v18, {v(OUT,4)}", f"ds_write_b128 v18, {v(OUT+4,4)} offset:16")
    p(f"ds_write_b128 v18, {v(OUT+8,4)} offset:4096", f"ds_write_b128 v18, {v(OUT+12,4)} offset:4112")
    p("v_lshrrev_b32 v2, 4, v1", "v_bfe_u32 v3, v1, 2, 2", "v_lshl_add_u32 v3, v2, 2, v3", "v_lshlrev_b32 v3, 5, v3")
    p("v_and_b32 v4, 3, v1", "v_lshl_add_u32 v3, v4, 3, v3")
    p(f"s_lshr_b32 s72, s{S_W}, 1", f"s_lshl_b32 s73, s72, 12", f"s_add_u32 s73, s73, {L_V}", "v_add_u32 v19, s73, v3")
    p(f"s_lshl_b32 s73, s{S_W}, 12", f"s_add_u32 s73, s73, {L_PK}", "v_add_u32 v18, s73, v3")
    stamp(p, f"e{layer}.ksm")
    p("s_waitcnt lgkmcnt(0)", "s_barrier")
    stamp(p, f"e{layer}.kbar")
    DK = 128; DZ = 132; ON = 136; FA = 96
    for ks in range(4):
        fa = FA + 8*ks
        p(f"ds_read_b64_tr_b16 {v(fa,2)}, v18 offset:{1024*ks}", f"ds_read_b64_tr_b16 {v(fa+2,2)}, v18 offset:{1024*ks+512}")
        p(f"ds_read_b64_tr_b16 {v(fa+4,2)}, v19 offset:{1024*ks}", f"ds_read_b64_tr_b16 {v(fa+6,2)}, v19 offset:{1024*ks+512}")
        if ks == 2: p("s_waitcnt lgkmcnt(8)")
    for i in range(4): p(f"v_mov_b32 v{ON+i}, s{S_ONES}")
    p("v_and_b32 v2, 15, v1", "v_lshrrev_b32 v3, 5, v1", "v_lshl_add_u32 v2, v3, 4, v2", "v_lshlrev_b32 v2, 4, v2")
    p("v_bfe_u32 v3, v1, 4, 1", "v_lshl_add_u32 v2, v3, 9, v2")
    p(f"s_lshl_b32 s73, s{S_W}, 10", f"s_add_u32 s73, s73, {L_KVT}", "v_add_u32 v2, s73, v2")
    p("v_lshlrev_b32 v3, 2, v1", "v_add_u32 v4, s73, v3")
    for ks in range(4):
        fa = FA + 8*ks
        p(f"s_waitcnt lgkmcnt({12-4*ks if ks > 0 else 8})" if ks < 3 else "s_waitcnt lgkmcnt(0)")
        p(f"v_mfma_f32_16x16x32_bf16 {v(DK,4)}, {v(fa,4)}, {v(fa+4,4)}, {'0' if ks == 0 else v(DK,4)}")
        p(f"v_mfma_f32_16x16x32_bf16 {v(DZ,4)}, {v(ON,4)}, {v(fa,4)}, {'0' if ks == 0 else v(DZ,4)}")
    qs = sub(p, softmax_pair, PQ, 16, E, OUT, 20)
    for l in qs[:18]: p(l)
    p(f"ds_write_b128 v2, {v(DK,4)}")
    for l in qs[18:36]: p(l)
    p("s_waitcnt lgkmcnt(0)")
    for i in range(4): p(f"ds_read_b32 v{140+i}, v4 offset:{256*i}")
    p(f"s_lshl_b32 s74, s{S_HP}, 1", f"s_lshr_b32 s75, s{S_W}, 1", "s_add_u32 s74, s74, s75")
    p(f"s_lshl_b32 s76, s74, 11", f"s_and_b32 s75, s{S_W}, 1", "s_lshl_b32 s77, s75, 9", "s_add_u32 s76, s76, s77", f"s_add_u32 s76, s76, {KV}")
    for l in qs[36:52]: p(l)
    main_lines = q.lines; main_p.uid = q.uid
    p = main_p
    if layer == 1:
        p("s_barrier")
        groups = wo_dma_groups(p)
        interleave(p, main_lines, groups, 9, start=4)
    else:
        for l in main_lines: p.lines.append(l)
    p("s_waitcnt lgkmcnt(0)")
    p("v_lshlrev_b32 v3, 2, v1")
    for i in range(4):
        p(f"buffer_atomic_add_f32 v{140+i}, v3, s[{R_WS}:{R_WS+3}], s76 offen offset:{(i&1)*256 + (i>>1)*1024}")
    p(f"s_lshl_b32 s76, s74, 7", "s_lshl_b32 s77, s75, 6", "s_add_u32 s76, s76, s77", f"s_add_u32 s76, s76, {Z}")
    p("s_mov_b32 exec_lo, 0xffff", "s_mov_b32 exec_hi, 0")
    p(f"buffer_atomic_add_f32 v{DZ}, v3, s[{R_WS}:{R_WS+3}], s76 offen")
    p("s_mov_b64 exec, -1")
    stamp(p, f"e{layer}.kv")
    for l in qs[52:]: p(l)
    p("v_and_b32 v2, 15, v1", "v_lshlrev_b32 v2, 4, v2", "v_lshrrev_b32 v3, 4, v1", "v_lshl_add_u32 v2, v3, 10, v2")
    p(f"s_lshl_b32 s74, s{S_RB}, 2", f"s_add_u32 s74, s74, s{S_W}", "s_lshl_b32 s74, s74, 16", f"s_lshl_b32 s75, s{S_HP}, 12", "s_add_u32 s74, s74, s75", f"s_add_u32 s74, s74, {PHI}")
    for c_ in range(4):
        p(f"buffer_store_dwordx4 {v(OUT+4*c_,4)}, v2, s[{R_WS}:{R_WS+3}], s74 offen offset:{256*c_} sc1")

def grid_arrive(p, epoch):
    p.c(f"grid barrier {epoch}: arrive")
    p("s_waitcnt vmcnt(0) lgkmcnt(0)", "s_barrier")
    L = p.lab("arr")
    p(f"s_cmp_lg_u32 s{S_W}, 0", f"s_cbranch_scc1 {L}")
    p(f"s_add_u32 s72, s{S_NONCE}, {epoch}", "s_lshl_b32 s73, s2, 7", "v_mov_b32 v2, s72", "v_mov_b32 v3, s73", "s_mov_b64 exec, 1")
    p(f"buffer_store_dword v2, v3, s[{R_WS}:{R_WS+3}], 0 offen sc0 sc1", "s_mov_b64 exec, -1")
    p(f"{L}:")

def grid_wait(p, epoch):
    p.c(f"grid barrier {epoch}: wait")
    Lp = p.lab("gw"); Lx = p.lab("gx")
    p("s_waitcnt vmcnt(0) lgkmcnt(0)")
    p("v_lshlrev_b32 v2, 7, v0", f"s_add_u32 s72, s{S_NONCE}, {epoch}", "s_mov_b32 s73, 0")
    p(f"{Lp}:")
    p(f"buffer_load_dword v3, v2, s[{R_WS}:{R_WS+3}], 0 offen sc1")
    p("s_add_u32 s73, s73, 1", "s_cmp_gt_u32 s73, 0x40000", f"s_cbranch_scc1 {Lx}")
    p("s_waitcnt vmcnt(0)", "v_subrev_u32 v3, s72, v3", "v_cmpx_le_u32 vcc, 8, v3", f"s_cbranch_execz {Lx}", "s_sleep 1", f"s_branch {Lp}")
    p(f"{Lx}:", "s_waitcnt vmcnt(0)", "s_mov_b64 exec, -1", "s_barrier")

def res_load(p, layer):
    if layer == 1:
        p("v_and_b32 v2, 15, v1", "v_lshlrev_b32 v2, 11, v2", "v_lshrrev_b32 v3, 4, v1", "v_lshl_add_u32 v2, v3, 3, v2")
        p(f"s_lshl_b32 s72, s{S_TB}, 15", f"s_lshl_b32 s73, s{S_CB}, 8", "s_add_u32 s72, s72, s73", f"s_lshl_b32 s73, s{S_W}, 6", "s_add_u32 s72, s72, s73")
        for ct in range(2):
            for tt in range(2):
                p(f"buffer_load_dwordx2 {v(RES+4*ct+2*tt,2)}, v2, s[{R_X0}:{R_X0+3}], s72 offen offset:{32*ct+1024*tt}")
    else:
        p("v_and_b32 v2, 15, v1", "v_lshlrev_b32 v2, 4, v2", "v_lshrrev_b32 v3, 4, v1", "v_lshl_add_u32 v2, v3, 14, v2")
        for ct in range(2):
            p(f"s_lshl_b32 s72, s{S_CB}, 5", f"s_lshl_b32 s73, s{S_W}, 3", "s_add_u32 s72, s72, s73", f"s_add_u32 s72, s72, {4*ct}", "s_lshl_b32 s72, s72, 14")
            p(f"s_lshl_b32 s73, s{S_TB}, 8", "s_add_u32 s72, s72, s73", f"s_add_u32 s72, s72, {WS_X2}")
            p(f"buffer_load_dwordx4 {v(RES+4*ct,4)}, v2, s[{R_WS}:{R_WS+3}], s72 offen sc1")

def p2_body(p, layer):
    KV = WS_KV1 if layer == 1 else WS_KV2
    Z = WS_Z1 if layer == 1 else WS_Z2
    PHI = WS_PHI1 if layer == 1 else WS_PHI2
    XO = WS_X1 if layer == 1 else WS_X3
    STT = WS_ST1 if layer == 1 else WS_ST2
    p.c(f"================ P2 (layer {layer}) ================")
    KF = 128; PF = 192; KB = 40; ZF = 72
    p("v_lshlrev_b32 v2, 4, v1")
    p(f"s_lshl_b32 s72, s{S_W}, 10", f"s_add_u32 s72, s72, {Z}")
    p(f"buffer_load_dwordx4 v[4:7], v2, s[{R_WS}:{R_WS+3}], s72 offen sc1")
    p(f"s_lshl_b32 s{SD0}, s{S_W}, 14", f"s_add_u32 s{SD0}, s{SD0}, {KV}")
    p(f"s_lshl_b32 s{SD1}, s{S_TB}, 16", f"s_lshl_b32 s74, s{S_W}, 14", f"s_add_u32 s{SD1}, s{SD1}, s74", f"s_add_u32 s{SD1}, s{SD1}, {PHI}")
    def loads(hh):
        p(f"s_add_u32 s{SD2}, s{SD0}, {2048*hh}", f"s_add_u32 s{SD3}, s{SD1}, {2048*hh}")
        p(f"buffer_load_dwordx4 {v(KF+8*hh,4)}, v2, s[{R_WS}:{R_WS+3}], s{SD2} offen sc1")
        p(f"buffer_load_dwordx4 {v(PF+8*hh,4)}, v2, s[{R_WS}:{R_WS+3}], s{SD3} offen sc1")
        p(f"buffer_load_dwordx4 {v(KF+8*hh+4,4)}, v2, s[{R_WS}:{R_WS+3}], s{SD2} offen offset:1024 sc1")
        p(f"buffer_load_dwordx4 {v(PF+8*hh+4,4)}, v2, s[{R_WS}:{R_WS+3}], s{SD3} offen offset:1024 sc1")
    for hh in range(4): loads(hh)
    p(f"s_lshl_b32 s74, s{S_W}, 9", f"s_add_u32 s74, s74, {L_ZL}", "v_lshlrev_b32 v3, 3, v1", "v_add_u32 v3, s74, v3")
    p("v_lshrrev_b32 v8, 4, v1", "v_lshlrev_b32 v8, 4, v8", "v_add_u32 v8, s74, v8")
    p(f"v_add_u32 v9, {L_OL}, v2", f"s_lshl_b32 s74, s{S_W}, 13", "v_add_u32 v9, s74, v9")
    stamp(p, f"p2{layer}.issued")
    p("s_waitcnt vmcnt(16)")
    p("v_cvt_pk_bf16_f32 v4, v4, v5", "v_cvt_pk_bf16_f32 v5, v6, v7", "ds_write_b64 v3, v[4:5]")
    p("s_waitcnt lgkmcnt(0)")
    for hh in range(8): p(f"ds_read_b128 {v(ZF+4*hh,4)}, v8 offset:{64*hh}")
    NB = (12, 112)
    issued = 17
    def stageA(hh):
        need = 1 + 4*(hh+1)
        p(f"s_waitcnt vmcnt({issued - need})")
        k = KF + 8*hh
        for j in range(4): p(f"v_cvt_pk_bf16_f32 v{KB+4*hh+j}, v{k+2*j}, v{k+2*j+1}")
        if hh == 0: p("s_waitcnt lgkmcnt(0)")
        else: p("s_nop 0")
        nb = NB[hh & 1]
        for tt in range(2):
            p(f"v_mfma_f32_16x16x32_bf16 {v(nb+8*tt+4,4)}, {v(ZF+4*hh,4)}, {v(PF+8*hh+4*tt,4)}, 0")
        for tt in range(2):
            p(f"v_mfma_f32_16x16x32_bf16 {v(nb+8*tt,4)}, {v(KB+4*hh,4)}, {v(PF+8*hh+4*tt,4)}, 0")
    def stageB(hh):
        nb = NB[hh & 1]
        for tt in range(2): p(f"v_add_f32 v{nb+8*tt+4}, 0x358637bd, v{nb+8*tt+4}")
        for tt in range(2): p(f"v_rcp_f32 v{nb+8*tt+4}, v{nb+8*tt+4}")
        for tt in range(2):
            for r in range(4): p(f"v_mul_f32 v{nb+8*tt+r}, v{nb+8*tt+r}, v{nb+8*tt+4}")
        for tt in range(2):
            ob = 28 + 4*tt + 2*(hh & 1)
            p(f"v_cvt_pk_bf16_f32 v{ob}, v{nb+8*tt}, v{nb+8*tt+1}", f"v_cvt_pk_bf16_f32 v{ob+1}, v{nb+8*tt+2}, v{nb+8*tt+3}")
        if hh & 1:
            p(f"ds_write_b128 v9, v[28:31] offset:{(hh>>1)*2048}", f"ds_write_b128 v9, v[32:35] offset:{(hh>>1)*2048+1024}")
    stageA(0)
    for hh in range(8):
        if hh + 4 < 8: loads(hh+4); issued += 4
        if hh + 1 < 8: stageA(hh+1)
        stageB(hh)
    stamp(p, f"p2{layer}.prep")
    p("s_waitcnt lgkmcnt(0)", "s_barrier")
    stamp(p, f"p2{layer}.obar")
    AC = 12; BF = 128
    p(f"v_add_u32 v9, {L_OL}, v2")
    def mf(t):
        for ct in range(2):
            for tt in range(2):
                acc = AC + 8*ct + 4*tt
                p(f"v_mfma_f32_16x16x32_bf16 {v(acc,4)}, {a(A_WO+8*t+4*ct,4)}, {v(BF+8*t+4*tt,4)}, {'0' if t == 0 else v(acc,4)}")
    for s_ in range(16):
        p(f"ds_read_b128 {v(BF+8*s_,4)}, v9 offset:{2048*s_}", f"ds_read_b128 {v(BF+8*s_+4,4)}, v9 offset:{2048*s_+1024}")
        if s_ >= 3:
            p("s_waitcnt lgkmcnt(6)"); mf(s_-3)
    p("v_and_b32 v2, 15, v1", "v_lshlrev_b32 v2, 4, v2", "v_lshrrev_b32 v3, 4, v1", "v_lshl_add_u32 v4, v3, 14, v2", "v_lshl_add_u32 v5, v3, 2, v2")
    for t in range(13, 16):
        p(f"s_waitcnt lgkmcnt({2*(15-t)})"); mf(t)
    stamp(p, f"p2{layer}.gemm")
    T = 40
    for ct in range(2):
        for tt in range(2):
            r = RES + 4*ct + 2*tt; t0 = T + 8*ct + 4*tt
            p(f"v_lshlrev_b32 v{t0}, 16, v{r}", f"v_and_b32 v{t0+1}, s{S_HIM}, v{r}", f"v_lshlrev_b32 v{t0+2}, 16, v{r+1}", f"v_and_b32 v{t0+3}, s{S_HIM}, v{r+1}")
    for ct in range(2):
        p(f"s_lshl_b32 s72, s{S_CB}, 5", f"s_lshl_b32 s73, s{S_W}, 3", "s_add_u32 s72, s72, s73", f"s_add_u32 s72, s72, {4*ct}", "s_lshl_b32 s72, s72, 14")
        p(f"s_lshl_b32 s73, s{S_TB}, 8", "s_add_u32 s72, s72, s73", f"s_add_u32 s{SD0+ct}, s72, {XO}")
    for ct in range(2):
        for tt in range(2):
            acc = AC + 8*ct + 4*tt; t0 = T + 8*ct + 4*tt
            p(f"v_pk_add_f32 {v(acc,2)}, {v(acc,2)}, {v(t0,2)}", f"v_pk_add_f32 {v(acc+2,2)}, {v(acc+2,2)}, {v(t0+2,2)}")
    for ct in range(2):
        o = 56 + 4*ct
        for tt in range(2):
            acc = AC + 8*ct + 4*tt
            p(f"v_cvt_pk_bf16_f32 v{o+2*tt}, v{acc}, v{acc+1}", f"v_cvt_pk_bf16_f32 v{o+2*tt+1}, v{acc+2}, v{acc+3}")
        p(f"buffer_store_dwordx4 {v(o,4)}, v4, s[{R_WS}:{R_WS+3}], s{SD0+ct} offen sc1")
    for tt in range(2):
        a0 = AC + 4*tt; a1 = AC + 8 + 4*tt
        p(f"v_pk_add_f32 v[48:49], {v(a0,2)}, {v(a0+2,2)}", f"v_pk_add_f32 v[50:51], {v(a1,2)}, {v(a1+2,2)}")
        p(f"v_pk_mul_f32 v[52:53], {v(a0,2)}, {v(a0,2)}", f"v_pk_fma_f32 v[52:53], {v(a0+2,2)}, {v(a0+2,2)}, v[52:53]")
        p("v_pk_add_f32 v[48:49], v[48:49], v[50:51]")
        p(f"v_pk_fma_f32 v[52:53], {v(a1,2)}, {v(a1,2)}, v[52:53]", f"v_pk_fma_f32 v[52:53], {v(a1+2,2)}, {v(a1+2,2)}, v[52:53]")
        p(f"v_add_f32 v{44+2*tt}, v48, v49", f"v_add_f32 v{45+2*tt}, v52, v53")
    p("s_nop 0", "v_permlane32_swap_b32 v44, v46", "v_permlane32_swap_b32 v45, v47", "v_add_f32 v44, v44, v46", "v_add_f32 v45, v45, v47")
    p(f"s_lshl_b32 s72, s{S_TB}, 8", f"s_add_u32 s72, s72, {STT}")
    p("v_permlane16_swap_b32 v44, v45", "v_add_f32 v44, v44, v45")
    p(f"buffer_atomic_add_f32 v44, v5, s[{R_WS}:{R_WS+3}], s72 offen")

def kfrag(kp):
    return a(FR_A+4*kp,4) if kp < NFA else v(FR_V+4*(kp-NFA),4)
def kfrag2(kp, h):
    return a(FR_A+4*kp+2*h,2) if kp < NFA else v(FR_V+4*(kp-NFA)+2*h,2)

def r_build(p):
    p.c("expand table T -> reversed kernel R (resident)")
    p("v_lshlrev_b32 v2, 3, v0", "v_sub_u32 v2, 2047, v2")
    for i in range(8): p(f"v_subrev_u32 v{24+i}, {i}, v2")
    for i in range(8): p(f"v_cvt_f32_i32 v{32+i}, v{24+i}")
    for i in range(8): p(f"v_cvt_pk_bf16_f32 v{32+i}, v{32+i}, v{32+i}")
    for i in range(8): p(f"v_and_b32 v{32+i}, 0xffff, v{32+i}")
    for i in range(8): p(f"v_subrev_u32 v{32+i}, 17024, v{32+i}")
    p("s_mov_b32 s76, 128")
    for i in range(8):
        p(f"v_cmp_gt_i32 s[{72+2*(i&1)}:{73+2*(i&1)}], s76, v{24+i}")
        if i > 0: p(f"v_cndmask_b32 v{32+i-1}, v{32+i-1}, v{24+i-1}, s[{72+2*((i-1)&1)}:{73+2*((i-1)&1)}]")
    p("s_nop 1", "v_cndmask_b32 v39, v39, v31, s[74:75]")
    for i in range(8): p(f"v_lshlrev_b32 v{8+i}, 1, v{32+i}")
    for i in range(8): p(f"v_add_u32 v{8+i}, {L_T}, v{8+i}")
    p("v_lshlrev_b32 v6, 4, v0", f"v_add_u32 v6, {L_R}, v6")
    p("s_waitcnt lgkmcnt(0)", "s_barrier")
    for ch in range(4):
        b = 24 + 8*(ch & 1)
        for i in range(8): p(f"ds_read_u16 v{b+i}, v{8+i} offset:{T_STRIDE*ch}")
        if ch > 0:
            pb = 24 + 8*((ch-1) & 1)
            p("s_waitcnt lgkmcnt(8)")
            for k in range(4): p(f"v_lshl_or_b32 v{40+k}, v{pb+2*k+1}, 16, v{pb+2*k}")
            p(f"ds_write_b128 v6, v[40:43] offset:{R_STRIDE*(ch-1)}")
    p("s_waitcnt lgkmcnt(0)")
    for k in range(4): p(f"v_lshl_or_b32 v{44+k}, v{32+2*k+1}, 16, v{32+2*k}")
    p(f"ds_write_b128 v6, v[44:47] offset:{R_STRIDE*3}")
    p("v_mov_b32 v36, 0", "v_mov_b32 v37, 0", "v_mov_b32 v38, 0", "v_mov_b32 v39, 0")
    p("v_lshrrev_b32 v2, 1, v0", f"v_mul_u32_u24 v2, {R_STRIDE}, v2", "v_and_b32 v3, 1, v0", "v_lshl_add_u32 v2, v3, 4, v2", f"v_add_u32 v2, {L_R+4096}, v2")
    p("v_cmp_gt_u32 vcc, 8, v0", "s_and_saveexec_b64 s[76:77], vcc")
    Lz = p.lab("rz")
    p(f"s_cbranch_execz {Lz}", "ds_write_b128 v2, v[36:39]", f"{Lz}:", "s_mov_b64 exec, s[76:77]")

def conv_prep(p):
    p.c("shifted copies of K, Toeplitz fragments")
    p("s_waitcnt lgkmcnt(0)", "s_barrier")
    p("v_lshlrev_b32 v6, 4, v0", f"v_add_u32 v7, {L_R}, v6")
    for ch in range(4):
        b = 8 + 8*ch
        p(f"ds_read_b128 {v(b,4)}, v7 offset:{R_STRIDE*ch}", f"ds_read_b64 {v(b+4,2)}, v7 offset:{R_STRIDE*ch+16}")
    p("v_mov_b32 v56, 0", "v_mov_b32 v57, 0", "v_mov_b32 v58, 0", "v_mov_b32 v59, 0")
    p("v_lshrrev_b32 v2, 1, v0", f"v_mul_u32_u24 v2, {CP_COPY}, v2", "v_and_b32 v3, 1, v0", "v_lshl_add_u32 v2, v3, 4, v2", f"v_add_u32 v2, {L_CP+4096}, v2")
    p("v_lshrrev_b32 v4, 5, v0", f"v_mul_u32_u24 v4, {U_CH}, v4", "v_and_b32 v3, 31, v0", "v_lshl_add_u32 v4, v3, 4, v4", f"v_add_u32 v4, {L_U}, v4")
    p("v_cmp_gt_u32 vcc, 32, v0", "s_and_saveexec_b64 s[76:77], vcc")
    Lz = p.lab("cz")
    p(f"s_cbranch_execz {Lz}", "ds_write_b128 v2, v[56:59]", f"{Lz}:", "s_mov_b64 exec, s[76:77]")
    p("v_cmp_gt_u32 vcc, 128, v0", "s_and_saveexec_b64 s[76:77], vcc")
    Lz = p.lab("uz")
    p(f"s_cbranch_execz {Lz}", "ds_write_b128 v4, v[56:59]", f"{Lz}:", "s_mov_b64 exec, s[76:77]")
    for ch in range(4):
        b = 8 + 8*ch
        p(f"s_waitcnt lgkmcnt({2*(3-ch)+2})" if ch < 3 else "s_waitcnt lgkmcnt(2)") if False else None
    p("s_waitcnt lgkmcnt(0)")
    for ch in range(4):
        b = 8 + 8*ch; base = L_CP + CP_CH*ch
        for k in range(4): p(f"v_alignbyte_b32 v{44+k}, v{b+k+1}, v{b+k}, 2", f"v_alignbyte_b32 v{48+k}, v{b+k+2}, v{b+k+1}, 2")
        for k in range(4): p(f"v_mov_b32 v{52+k}, v{b+k+1}")
        p(f"v_add_u32 v5, {base}, v6")
        p(f"ds_write_b128 v5, {v(b,4)} offset:{3*CP_COPY}", f"ds_write_b128 v5, v[44:47] offset:{2*CP_COPY}")
        p(f"ds_write_b128 v5, v[48:51]", f"ds_write_b128 v5, v[52:55] offset:{1*CP_COPY}")
    p("v_and_b32 v2, 3, v1", f"v_mul_u32_u24 v2, {CP_COPY}, v2", "v_and_b32 v3, 12, v1", "v_sub_u32 v3, 28, v3")
    p("v_lshrrev_b32 v4, 5, v1", "v_lshlrev_b32 v4, 4, v4", "v_sub_u32 v3, v3, v4", "v_bfe_u32 v4, v1, 4, 1", "v_lshl_add_u32 v3, v4, 3, v3")
    p("v_lshl_add_u32 v2, v3, 1, v2", f"s_mul_i32 s72, s{S_W}, {CP_CH}", f"s_add_u32 s72, s72, {L_CP}", "v_add_u32 v2, s72, v2")
    stamp(p, "cp.copies")
    p("s_waitcnt lgkmcnt(0)", "s_barrier")
    for kp in range(64):
        p(f"ds_read_b64 {kfrag2(kp,0)}, v2 offset:{64*(63-kp)}", f"ds_read_b64 {kfrag2(kp,1)}, v2 offset:{64*(63-kp)+8}")
        if kp % 4 == 3: p("s_waitcnt lgkmcnt(6)")
    p("s_waitcnt lgkmcnt(0)")

def conv_body(p, layer):
    XI = WS_X1 if layer == 1 else WS_X3
    STT = WS_ST1 if layer == 1 else WS_ST2
    p.c(f"================ conv (layer {layer}) ================")
    XR = 64; SR = 80
    p("v_lshrrev_b32 v2, 7, v0", "v_and_b32 v3, 127, v0", "v_lshlrev_b32 v3, 1, v3")
    for o in range(2):
        p(f"s_xor_b32 s72, s{S_HS}, {o}", "s_cmp_eq_u32 s72, 0", "s_cselect_b32 s73, 3, 1")
        p("v_mul_u32_u24 v4, s73, v2", "v_add_u32 v4, s72, v4", f"v_lshl_add_u32 v{6+o}, v4, 8, v3")
    p(f"s_lshl_b32 s72, s{S_CG}, 14", f"s_add_u32 s72, s72, {XI}", f"s_mov_b32 s73, {STT}")
    for o in range(2): p(f"v_lshlrev_b32 v{8+o}, 3, v{6+o}")
    for o in range(2): p(f"v_add_u32 v{10+o}, 8192, v{8+o}")
    for k in range(4):
        o = k >> 1; vr = 8+o if (k & 1) == 0 else 10+o
        p(f"buffer_load_dwordx4 {v(SR+4*k,4)}, v{vr}, s[{R_WS}:{R_WS+3}], s73 offen sc1")
        p(f"buffer_load_dwordx4 {v(XR+4*k,4)}, v{vr}, s[{R_WS}:{R_WS+3}], s72 offen sc1")
    for o in range(2): p(f"v_lshlrev_b32 v{12+o}, 1, v{6+o}", f"v_add_u32 v{12+o}, {L_U+512}, v{12+o}")
    stamp(p, f"c{layer}.issued")
    XK = 16; UK = 32
    for k in range(4):
        o = k >> 1
        sr = SR + 4*k; xr = XR + 4*k
        p(f"s_waitcnt vmcnt({7-2*k})")
        for t in range(2):
            S1 = sr + 2*t; S2 = S1 + 1
            p(f"v_mul_f32 v{S1}, 0x3b000000, v{S1}", f"v_mul_f32 v{S2}, 0x3b000000, v{S2}")
        for t in range(2):
            S1 = sr + 2*t; S2 = S1 + 1
            p(f"v_fma_f32 v{S2}, -v{S1}, v{S1}, v{S2}")
        for t in range(2): p(f"v_add_f32 v{sr+2*t+1}, 0x3727c5ac, v{sr+2*t+1}")
        for t in range(2): p(f"v_rsq_f32 v{44+2*t}, v{sr+2*t+1}")
        p(f"s_waitcnt vmcnt({6-2*k})")
        xb = XK + 8*k if k < 2 else 48
        for t in range(2):
            for h in range(2):
                p(f"v_lshlrev_b32 v{xb+4*t+2*h}, 16, v{xr+2*t+h}", f"v_and_b32 v{xb+4*t+2*h+1}, s{S_HIM}, v{xr+2*t+h}")
        for t in range(2): p(f"v_mul_f32 v{45+2*t}, v{sr+2*t}, v{44+2*t}")
        for t in range(2):
            for h in range(2):
                p(f"v_pk_fma_f32 {v(56+4*t+2*h,2)}, {v(xb+4*t+2*h,2)}, {v(44+2*t,2)}, {v(44+2*t,2)} op_sel:[0,0,1] op_sel_hi:[1,0,1] neg_lo:[0,0,1] neg_hi:[0,0,1]")
        ub = UK + 4*k if k < 2 else 40
        for c_ in range(4): p(f"v_cvt_pk_bf16_f32 v{ub+c_}, v{56+c_}, v{60+c_}")
        for c_ in range(4): p(f"ds_write_b32 v{12+o}, v{ub+c_} offset:{U_CH*c_ + 2048*(k&1)}")
    p("v_and_b32 v2, 15, v1", "v_lshrrev_b32 v3, 5, v1", "v_sub_u32 v2, v2, v3", "v_lshlrev_b32 v2, 5, v2", "v_bfe_u32 v3, v1, 4, 1", "v_lshl_add_u32 v2, v3, 4, v2")
    p(f"s_mul_i32 s72, s{S_W}, {U_CH}", f"s_add_u32 s72, s72, {L_U+64}", "v_add_u32 v2, s72, v2")
    stamp(p, f"c{layer}.ln")
    p("s_waitcnt lgkmcnt(0)", "s_barrier")
    stamp(p, f"c{layer}.ubar")
    ACC = 96
    Lb = p.lab("hsB"); Le = p.lab("hsE")
    p(f"s_cmp_eq_u32 s{S_HS}, 0", f"s_cbranch_scc0 {Lb}")
    for hs, hl in ((0, (0,3,4,7)), (1, (1,2,5,6))):
        if hs == 1: p(f"{Lb}:")
        jmax = max(hl); first = set()
        def bread(r, j): p(f"ds_read_b128 {v(64+4*j,4)}, v2 offset:{64*(8*j-r+7)}")
        for j in range(jmax+1): bread(0, j)
        for r in range(8):
            js = list(range(jmax+1))
            grp = [js[i:i+2] for i in range(0, len(js), 2)]
            for g in grp:
                if r < 7 or True:
                    if r == 7:
                        later = (jmax + 1) - (g[-1] + 1)
                    else:
                        later = (jmax + 1) - len(g)
                    p(f"s_waitcnt lgkmcnt({later})")
                for j in g:
                    for h in hl:
                        if h >= j:
                            acc = ACC + 4*hl.index(h)
                            c_ = "0" if h not in first else v(acc,4); first.add(h)
                            p(f"v_mfma_f32_16x16x32_bf16 {v(acc,4)}, {kfrag(8*(h-j)+r)}, {v(64+4*j,4)}, {c_}")
                if r < 7:
                    for j in g: bread(r+1, j)
        if hs == 0: p(f"s_branch {Le}")
    p(f"{Le}:")
    p("v_and_b32 v2, 15, v1", "v_lshlrev_b32 v2, 6, v2", "v_lshrrev_b32 v3, 4, v1", "v_lshl_add_u32 v2, v3, 4, v2")
    p(f"s_lshl_b32 s72, s{S_W}, 12", f"s_add_u32 s72, s72, {L_Y}", "v_add_u32 v2, s72, v2")
    p("v_lshrrev_b32 v3, 7, v0", "v_and_b32 v4, 127, v0", "v_lshlrev_b32 v4, 3, v4", "v_lshl_add_u32 v3, v3, 10, v4", f"v_add_u32 v3, {L_Y}, v3")
    stamp(p, f"c{layer}.mfma")
    for q in range(4): p(f"ds_write_b128 v2, {v(ACC+4*q,4)} offset:{1024*q}")
    for k in range(2):
        xb = XK + 8*k; ub = UK + 4*k
        for c_ in range(4):
            p(f"v_lshlrev_b32 v44, 16, v{ub+c_}", f"v_and_b32 v45, s{S_HIM}, v{ub+c_}")
            p(f"v_fma_f32 v{xb+c_}, v44, s{S_D0+c_}, v{xb+c_}", f"v_fma_f32 v{xb+4+c_}, v45, s{S_D0+c_}, v{xb+4+c_}")
    if layer == 1:
        p(f"s_lshl_b32 s72, s{S_CG}, 14", f"s_add_u32 s72, s72, {WS_X2}", "s_add_u32 s73, s72, 8192")
    else:
        p(f"v_lshlrev_b32 v10, 10, v6", f"s_lshl_b32 s72, s{S_CG}, 3", f"s_add_u32 s73, s72, {1024*1024}")
    p("s_waitcnt lgkmcnt(0)", "s_barrier")
    for k in range(2):
        for c_ in range(4): p(f"ds_read_b64 {v(64+8*k+2*c_,2)}, v3 offset:{4096*c_ + 2048*k}")
    for k in range(2):
        p(f"s_waitcnt lgkmcnt({4 if k == 0 else 0})")
        y = 64 + 8*k; xb = XK + 8*k
        for c_ in range(4):
            p(f"v_add_f32 v{y+2*c_}, v{y+2*c_}, v{xb+c_}", f"v_add_f32 v{y+2*c_+1}, v{y+2*c_+1}, v{xb+4+c_}")
        o_ = 48 + 4*k
        p(f"v_cvt_pk_bf16_f32 v{o_}, v{y}, v{y+2}", f"v_cvt_pk_bf16_f32 v{o_+1}, v{y+4}, v{y+6}")
        p(f"v_cvt_pk_bf16_f32 v{o_+2}, v{y+1}, v{y+3}", f"v_cvt_pk_bf16_f32 v{o_+3}, v{y+5}, v{y+7}")
        if layer == 1:
            p(f"buffer_store_dwordx4 {v(o_,4)}, v8, s[{R_WS}:{R_WS+3}], s{72+k} offen sc1")
        else:
            p(f"buffer_store_dwordx2 {v(o_,2)}, v10, s[{R_OUT}:{R_OUT+3}], s{72+k} offen")
            p(f"buffer_store_dwordx2 {v(o_+2,2)}, v10, s[{R_OUT}:{R_OUT+3}], s{72+k} offen offset:1024")

def w_reload(p):
    p("v_lshlrev_b32 v2, 4, v1")
    p(f"s_mul_i32 s72, s{S_HP}, 98304", f"s_mul_i32 s73, s{S_W}, 24576", "s_add_u32 s72, s72, s73", f"s_add_u32 s72, s72, {WS_WF}")
    for u in range(24):
        p(f"s_add_u32 m0, s73, {1024*u}", f"s_add_u32 s74, s72, {1024*u}")
        p(f"buffer_load_dwordx4 v2, s[{R_WS}:{R_WS+3}], s74 offen sc1 lds")

def p4_main(p):
    p.c("================ P4 ================")
    GR = 28; WB3 = 44
    p("v_and_b32 v2, 15, v1", "v_lshlrev_b32 v2, 4, v2", "v_lshrrev_b32 v3, 4, v1", "v_lshl_add_u32 v2, v3, 14, v2")
    p(f"s_lshl_b32 s72, s{S_RB}, 10", f"s_lshl_b32 s73, s{S_W}, 8", "s_add_u32 s72, s72, s73", f"s_add_u32 s{SD0}, s72, {WS_X2}")
    p("v_lshlrev_b32 v6, 4, v1", "v_add_u32 v7, 49152, v6", "v_mov_b32 v12, 0", "v_mov_b32 v13, 0")
    def xload(s_):
        p(f"s_add_u32 s{SD1}, s{SD0}, {65536*s_}", f"buffer_load_dwordx4 {v(XF+4*s_,4)}, v2, s[{R_WS}:{R_WS+3}], s{SD1} offen sc1")
    def wread(s_):
        b = WB3 + 12*(s_ % 3); r = 6 if s_ < 16 else 7; o = (s_ % 16)*3072
        return [f"ds_read_b128 {v(b+4*t,4)}, v{r} offset:{o+1024*t}" for t in range(3)]
    NPRE = 14
    for s_ in range(NPRE): xload(s_)
    p(*wread(0)); p(*wread(1))
    stamp(p, "p4.issued")
    issued = NPRE
    def swaps(s_):
        x = XF + 4*s_
        p(f"s_waitcnt vmcnt({issued - (s_+1)})", f"v_permlane16_swap_b32 v{x}, v{x+2}", f"v_permlane16_swap_b32 v{x+1}, v{x+3}")
    swaps(0)
    for s_ in range(32):
        b = WB3 + 12*(s_ % 3); x = XF + 4*s_
        rd = wread(s_+2) if s_+2 < 32 else ["", "", ""]
        ops = []
        for j in range(4):
            lo = 8 + 2*(j & 1)
            ops += [f"v_lshlrev_b32 v{lo}, 16, v{x+j}", f"v_and_b32 v{lo+1}, s{S_HIM}, v{x+j}", f"v_add_f32 v12, v12, v{lo}", f"v_add_f32 v13, v13, v{lo+1}"]
        z = (lambda A: "0" if s_ == 0 else v(A,16))
        nout = 3 if s_+1 < 32 else 0
        p(f"s_waitcnt lgkmcnt({nout})")
        p(f"v_mfma_f32_32x32x16_bf16 {v(AQ,16)}, {v(b,4)}, {v(x,4)}, {z(AQ)}"); p(rd[0]); p(*ops[0:4])
        if issued < 32: xload(issued); issued += 1
        p(f"v_mfma_f32_32x32x16_bf16 {v(AK,16)}, {v(b+4,4)}, {v(x,4)}, {z(AK)}"); p(rd[1]); p(*ops[4:8])
        p(f"v_mfma_f32_32x32x16_bf16 {v(AV,16)}, {v(b+8,4)}, {v(x,4)}, {z(AV)}"); p(rd[2]); p(*ops[8:12])
        p(f"v_mfma_f32_32x32x16_bf16 {v(GR,16)}, {v(x,4)}, {v(x,4)}, {z(GR)}")
        if s_ < 31: swaps(s_+1)
        p(*ops[12:16])
    p("v_add_f32 v12, v12, v13", "v_and_b32 v8, 1, v1", "v_and_b32 v9, 2, v1", "v_and_b32 v10, 8, v1", "v_and_b32 v11, 16, v1")
    p("v_cmp_ne_u32 s[72:73], 0, v8", "v_cmp_ne_u32 s[74:75], 0, v9", "v_cmp_ne_u32 s[76:77], 0, v10", "v_cmp_ne_u32 vcc, 0, v11")
    p("v_mov_b32 v13, v12", "v_and_b32 v8, 4, v1", "v_permlane32_swap_b32 v12, v13")
    for k in range(8): p(f"v_cndmask_b32 v{GR+k}, v{GR+2*k}, v{GR+2*k+1}, s[72:73]")
    for k in range(4): p(f"v_cndmask_b32 v{GR+k}, v{GR+2*k}, v{GR+2*k+1}, s[74:75]")
    for k in range(2): p(f"v_cndmask_b32 v{GR+k}, v{GR+2*k}, v{GR+2*k+1}, s[76:77]")
    p(f"v_cndmask_b32 v{GR}, v{GR}, v{GR+1}, vcc", "v_cmp_ne_u32 vcc, 0, v8", "v_add_f32 v2, v12, v13")
    p(f"v_mov_b32 v9, v{GR}", "s_nop 0", f"v_permlane32_swap_b32 v{GR}, v9")
    p(f"v_cndmask_b32 v3, v{GR}, v9, vcc")

def finish(p):
    p("s_waitcnt vmcnt(0)")
    p("Lend:", "s_endpgm")

def build(stop):
    p = Prog()
    prologue(p)
    stamp(p, "start")
    p1(p); stamp(p, "p1gemm"); attn_epilogue(p, 1); stamp(p, "p1epi")
    if stop != "p1":
        grid_arrive(p, 1); stamp(p, "arr1")
        wo_reads(p); stamp(p, "w1.wo"); res_load(p, 1)
        p("s_barrier")
        kgen_b(p)
        stamp(p, "win1")
        grid_wait(p, 1); stamp(p, "bar1")
        p2_body(p, 1); stamp(p, "p21.end")
    if stop not in ("p1", "p2"):
        grid_arrive(p, 2); stamp(p, "arr2")
        r_build(p); stamp(p, "w2.r"); conv_prep(p); stamp(p, "win2")
        grid_wait(p, 2); stamp(p, "bar2")
        conv_body(p, 1); stamp(p, "c1.end")
    if stop not in ("p1", "p2", "p3"):
        grid_arrive(p, 3); stamp(p, "arr3")
        w_reload(p)
        grid_wait(p, 3); stamp(p, "bar3")
        p4_main(p); stamp(p, "p4.gemm"); attn_epilogue(p, 2); stamp(p, "p4.epi")
        grid_arrive(p, 4); stamp(p, "arr4")
        res_load(p, 2)
        grid_wait(p, 4); stamp(p, "bar4")
        p2_body(p, 2)
        grid_arrive(p, 5); stamp(p, "arr5")
        conv_prep(p); stamp(p, "w5.prep")
        grid_wait(p, 5); stamp(p, "bar5")
        conv_body(p, 2)
    p("s_waitcnt vmcnt(0)"); stamp(p, "end")
    stamp_dump(p)
    finish(p)
    return wrap(p.finalize(verbose=VERB))

VERB = False
if __name__ == "__main__":
    stop = sys.argv[1] if len(sys.argv) > 1 else "all"
    out = sys.argv[2] if len(sys.argv) > 2 else "k_all.s"
    PROF = "prof" in sys.argv[3:]
    for x in sys.argv[3:]:
        if x.startswith("sel="): STAMP_SEL = set(x[4:].split(","))
    VERB = "v" in sys.argv[3:]
    CLK = "clk" in sys.argv[3:]
    for x in sys.argv[3:]:
        if x.startswith("dbg="): DBGSTAMP = int(x[4:])
    open(out, "w").write(build(stop))
    if PROF: open(out + ".names", "w").write(",".join(STAMP_NAMES))
```
